```python
import torch

def _softmax(x, axis=-1):
    return torch.softmax(x, dim=axis)

def _gelu(x):
    return torch.nn.functional.gelu(x, approximate='tanh')

def _silu(x):
    return torch.nn.functional.silu(x)

def _sigmoid(x):
    return torch.sigmoid(x)

def _layernorm(x, axis=-1, eps=1e-05):
    m = x.mean(dim=axis, keepdim=True)
    v = x.var(dim=axis, keepdim=True, unbiased=False)
    return (x - m) / torch.sqrt(v + eps)

def _scatter_add(tgt, idx, src, axis=0):
    return tgt.clone().index_add_(axis, idx, src)

def _segment_sum(src, seg, n):
    out = torch.zeros((n,) + src.shape[1:], dtype=src.dtype)
    return out.index_add_(0, seg, src)

def _pad(x, pw):
    flat = tuple((v for pair in reversed(pw) for v in pair))
    return torch.nn.functional.pad(x, flat)
kernel_name = 'adaLN_cond__mha_block__dense_activation_relu__prompt'

def setup_inputs():

    _w = lambda a: (lambda t: t.to(torch.bfloat16) if t.is_floating_point() else t)(torch.as_tensor(a))

    def _A_setup():
        B, S, D, H = (1, 2048, 640, 32)
        return {'x': _w((lambda *s: torch.randn(*s, dtype=torch.bfloat16) * 0.05)(B, S, D)), 'wqkv': _w((lambda *s: torch.randn(*s, dtype=torch.bfloat16) * 0.05)(D, 3 * D)), 'wo': _w((lambda *s: torch.randn(*s, dtype=torch.bfloat16) * 0.05)(D, D))}
    _A_in = _A_setup()

    def _B_setup():
        B, S, D, Dff = (1, 2048, 640, 1728)
        return {'x': _w((lambda *s: torch.randn(*s, dtype=torch.bfloat16) * 0.05)(B, S, D)), 'w1': _w((lambda *s: torch.randn(*s, dtype=torch.bfloat16) * 0.05)(D, Dff)), 'w2': _w((lambda *s: torch.randn(*s, dtype=torch.bfloat16) * 0.05)(Dff, D))}
    _B_in = _B_setup()
    return {'A_x': _A_in['x'], 'A_wqkv': _A_in['wqkv'], 'A_wo': _A_in['wo'], 'B_x': _B_in['x'], 'B_w1': _B_in['w1'], 'B_w2': _B_in['w2'], 'c': _w((lambda *s: torch.randn(*s, dtype=torch.bfloat16) * 0.1)(1, 640) * 8.0), 'w_mod': _w((lambda *s: torch.randn(*s, dtype=torch.bfloat16) * 0.1)(640, 6 * 640) * 640 ** (-0.5) * 8.0)}

def reference(A_x, A_wqkv, A_wo, B_x, B_w1, B_w2, c, w_mod):

    def _A_ref(x, wqkv, wo):
        B, S, D = x.shape
        H = 32
        Dh = D // H
        qkv = (lambda x, *d: x.permute(*d))((x @ wqkv).reshape(B, S, 3, H, Dh), 2, 0, 3, 1, 4)
        q, k, v = (qkv[0], qkv[1], qkv[2])
        scores = torch.einsum('bhqd,bhkd->bhqk', q, k) * Dh ** (-0.5)
        p = _softmax(scores, axis=-1)
        o = torch.einsum('bhqk,bhkd->bhqd', p, v)
        return (lambda x, *d: x.permute(*d))(o, 0, 2, 1, 3).reshape(B, S, D) @ wo

    def _B_ref(x, w1, w2):
        h = torch.einsum('bsd,df->bsf', x, w1)
        zero = torch.zeros_like(h)
        h = torch.maximum(h, zero)
        return torch.einsum('bsf,fd->bsd', h, w2)
    x = A_x
    mod = (_silu(c) @ w_mod).reshape(c.shape[0], 6, 1, -1)
    sa, ca, ga, sb, cb, gb = (mod[:, 0].clone(), mod[:, 1].clone(), mod[:, 2].clone(), mod[:, 3].clone(), mod[:, 4].clone(), mod[:, 5].clone())
    h = _layernorm(x, axis=-1) * (1 + ca) + sa
    x = x + ga * _A_ref(h, A_wqkv, A_wo)
    h = _layernorm(x, axis=-1) * (1 + cb) + sb
    x = x + gb * _B_ref(h, B_w1, B_w2)
    return x
```

```python
NAME = "adaLN_cond__mha_block__dense_activation_relu__prompt"
S, D, DFF, H, DH = 2048, 640, 1728, 32, 20

MODP = 0x0
UB = 0x10000
FLAGS = 0x14000
FLAGS_BYTES = 0x8000
STATS = 0x20000
XH = 0x60000
QQ = 0x2E0000
KK = 0x560000
VV = 0x7E8000
OO = 0xA70000
YY = 0xCF0000
FF = 0xF70000
WOF = 0x1630000
W2F = 0x16F8000
X1 = 0x1914000
WS_END = 0x1F14000
KVSTRIDE = 41472
VPITCH = 10368
PT640 = 40960
PT1728 = 110592
SL_WO = 102400
SL_W2 = 276480
OOB = 0x80000000

ARG = dict(x=0, wqkv=8, wo=16, w1=32, w2=40, c=48, wmod=56, out=64, dbg=72, ws=80)
SIZE = dict(x=S * D * 2, wqkv=D * 3 * D * 2, wo=D * D * 2, w1=D * DFF * 2, w2=DFF * D * 2, c=D * 2,
            wmod=D * 6 * D * 2, out=S * D * 2, dbg=256, ws=WS_END)

def vr(i, n=1):
    return f"v{i}" if n == 1 else f"v[{i}:{i+n-1}]"

def sr(i, n=1):
    return f"s{i}" if n == 1 else f"s[{i}:{i+n-1}]"

DPP_ALL = "row_mask:0xf bank_mask:0xf"

class Asm:
    def __init__(self):
        self.lines = []
    def __call__(self, text):
        for l in text.split("\n"):
            l = l.strip()
            if not l:
                continue
            self.lines.append(l if (l.endswith(":") or l.startswith(".")) else "    " + l)
    def srd(self, base, name):
        self(f"s_load_dwordx2 {sr(base, 2)}, s[0:1], {ARG[name]}")
        self(f"s_mov_b32 s{base+2}, {SIZE[name]}")
        self(f"s_mov_b32 s{base+3}, 0x20000")
    def begin(self, name):
        self(f".globl {name}\n.p2align 8\n.type {name},@function\n{name}:")
    def text(self):
        return "\n".join(self.lines) + "\n"

def descriptor(name, vgpr, sgpr=96):
    return f""".p2align 6
.amdhsa_kernel {name}
  .amdhsa_next_free_vgpr {vgpr}
  .amdhsa_next_free_sgpr {sgpr}
  .amdhsa_accum_offset {(vgpr + 3) // 4 * 4}
  .amdhsa_group_segment_fixed_size 0
  .amdhsa_kernarg_size 88
  .amdhsa_user_sgpr_count 2
  .amdhsa_user_sgpr_kernarg_segment_ptr 1
  .amdhsa_system_sgpr_workgroup_id_x 1
.end_amdhsa_kernel
"""

def interleave(primary, fillers):
    out = []
    for i, p in enumerate(primary):
        out.append(p)
        if i < len(fillers):
            out += fillers[i]
    return out
```

```python
from gcommon import *

V_K1, V_K2, V_V0, V_V1, V_IDX = 4, 5, 6, 7, 8
OA = 16
SB = 80
Q1 = 144
Q2 = 160
KV = 168
ATT_PART = 0
ATT_REM = 8 * 9216
ATT_LDS = ATT_REM + 1024
B_BARRIER_STAGE = 12

def kvb(i):
    b = KV + 14 * (i % 4)
    return b, b + 4, b + 6, b + 10

def kv_load(i, piece, s_off):
    k1, k2, v0, v1 = kvb(i)
    return [f"buffer_load_dwordx4 {vr(k1,4)}, v{V_K1}, s[20:23], s{s_off} offen",
            f"buffer_load_dwordx2 {vr(k2,2)}, v{V_K2}, s[20:23], s{s_off} offen",
            f"buffer_load_dwordx4 {vr(v0,4)}, v{V_V0}, s[20:23], s{s_off} offen",
            f"buffer_load_dwordx4 {vr(v1,4)}, v{V_V1}, s[20:23], s{s_off} offen"][piece]

def qk2(n):
    return f"v_mfma_f32_32x32x8_bf16 {vr(SB+16*(n%4),16)}, {vr(kvb(n//4)[1],2)}, {vr(Q2+2*(n%4),2)}, 0"
def qk1(n):
    d = vr(SB+16*(n%4), 16)
    return f"v_mfma_f32_32x32x16_bf16 {d}, {vr(kvb(n//4)[0],4)}, {vr(Q1+4*(n%4),4)}, {d}"
def pv(n, half):
    return f"v_smfmac_f32_32x32x32_bf16 {vr(OA+16*(n%4),16)}, {vr(kvb(n//4)[2+half],4)}, {vr(SB+16*(n%4)+8*half,8)}, v{V_IDX}"

def attn_setup(a):
    a(f"""
    s_lshr_b32 s43, s40, 2
    s_and_b32 s44, s40, 3
    s_mul_i32 s45, s42, 2560
    s_mul_i32 s46, s43, 1536
    s_add_u32 s46, s46, s45
    v_lshlrev_b32 v{V_K1}, 4, v1
    v_add_u32 v{V_K1}, s46, v{V_K1}
    v_and_b32 v10, 31, v1
    v_lshrrev_b32 v11, 5, v1
    v_lshlrev_b32 v{V_K2}, 4, v10
    v_lshl_add_u32 v{V_K2}, v11, 3, v{V_K2}
    s_add_u32 s45, s45, 1024
    v_add_u32 v{V_K2}, s45, v{V_K2}
    s_lshl_b32 s47, s43, 2
    v_add_u32 v12, s47, v10
    v_subrev_u32 v13, 20, v12
    v_cmp_gt_u32 vcc, 20, v12
    s_mul_i32 s47, s42, 40
    s_mul_i32 s48, s43, 20
    v_cndmask_b32 v12, v13, v12, vcc
    s_add_u32 s47, s47, s48
    v_add_u32 v12, s47, v12
    v_mov_b32 v13, 640
    v_cmp_gt_u32 vcc, 20, v10
    v_mul_u32_u24 v14, {VPITCH}, v11
    v_add_u32 v14, {VV - KK}, v14
    v_cndmask_b32 v12, v13, v12, vcc
    v_lshl_add_u32 v{V_V0}, v12, 4, v14
    v_add_u32 v{V_V1}, {2*VPITCH}, v{V_V0}
    v_mov_b32 v{V_IDX}, 0xdddddddd
    v_cmp_eq_u32 s[50:51], s43, v11
    s_mul_i32 s49, s44, {16*KVSTRIDE}
    s_add_u32 s49, s49, {KK}
    """)
    for i in range(0, 64, 2):
        a(f"v_mov_b64 {vr(OA+i,2)}, 0")

def attn_main(a, st=""):
    for jj in range(4):
        a(f"""
        s_add_u32 s52, s44, {jj}
        s_and_b32 s52, s52, 3
        s_lshl_b32 s53, s41, 2
        s_add_u32 s52, s52, s53
        s_mul_i32 s52, s52, {PT640}
        s_add_u32 s{54+jj}, s52, {QQ}
        """)
    def qload(jj):
        a(f"buffer_load_dwordx2 {vr(Q2+2*jj,2)}, v{V_K2}, s[20:23], s{54+jj} offen")
        a(f"buffer_load_dwordx4 {vr(Q1+4*jj,4)}, v{V_K1}, s[20:23], s{54+jj} offen")
    qload(0)
    a(kv_load(0, 1, 49)); a(kv_load(0, 0, 49))
    for jj in range(1, 4): qload(jj)
    a(kv_load(0, 2, 49)); a(kv_load(0, 3, 49))
    for i in range(1, 4):
        a(f"s_add_u32 s49, s49, {KVSTRIDE}")
        for pc in range(4): a(kv_load(i, pc, 49))
    a("s_waitcnt vmcnt(20)")
    for r in range(2):
        a(f"v_cndmask_b32 v{Q2+r}, 0, v{Q2+r}, s[50:51]")
    a("s_nop 1")
    a(qk2(0)); a(qk1(0))
    a("s_waitcnt vmcnt(12)")
    for r in range(2, 8):
        a(f"v_cndmask_b32 v{Q2+r}, 0, v{Q2+r}, s[50:51]")
    a("s_nop 4")
    issued = 16
    for n in range(64):
        e = [f"v_exp_f32 v{SB+16*(n%4)+r}, v{SB+16*(n%4)+r}" for r in range(16)]
        pre = []
        if n % 4 == 3 and n + 1 < 64:
            pre.append(f"s_waitcnt vmcnt({issued - 4*((n+1)//4 + 1)})")
        if n == B_BARRIER_STAGE:
            pre += ["s_cmp_eq_u32 s43, 0", "s_cbranch_scc1 L_att_nob", "s_barrier", "L_att_nob:"]
        ld = []
        if n >= 5 and (n - 5)//4 + 4 < 16:
            if (n - 5) % 4 == 0:
                ld.append(f"s_add_u32 s49, s49, {KVSTRIDE}")
            ld.append(kv_load((n - 5)//4 + 4, (n - 5) % 4, 49))
            issued += 1
        seq = e[0:2] + pre
        if n + 1 < 64: seq.append(qk2(n + 1))
        seq += ld + e[2:6]
        if n + 1 < 64: seq.append(qk1(n + 1))
        seq += e[6:10]
        seq.append(pv(n - 1, 1) if n > 0 else 's_nop 0')
        seq += e[10:14] + [pv(n, 0)] + e[14:16]
        for l in seq: a(l)
    a(f"""
    s_mul_i32 s52, s43, {4*9216}
    v_lshlrev_b32 v10, 4, v1
    """)
    a(pv(63, 1))
    for jj in range(1, 4):
        a(f"""
        s_add_u32 s53, s44, {jj}
        s_and_b32 s53, s53, 3
        s_mul_i32 s53, s53, 9216
        s_add_u32 s53, s53, s52
        v_add_u32 v{10+jj}, s53, v10
        """)
    for jj in range(1, 4):
        for q in range(3):
            a(f"ds_write_b128 v{10+jj}, {vr(OA+16*jj+4*q,4)} offset:{ATT_PART + (jj-1)*3072 + q*1024}")
    a(f"""
    s_mul_i32 s53, s40, 9216
    v_add_u32 v11, s53, v10
    s_waitcnt lgkmcnt(0)
    s_barrier
    """)
    for i in range(9):
        a(f"ds_read_b128 {vr(SB+4*i,4)}, v11 offset:{ATT_PART + i*1024}")
    a(f"""
    v_and_b32 v12, 31, v1
    s_lshl_b32 s53, s44, 8
    s_add_u32 s53, s53, {ATT_REM}
    v_lshl_add_u32 v12, v12, 3, s53
    ds_read_b64 {vr(SB+40,2)}, v12
    s_add_u32 s54, s54, {OO - QQ}
    """)
    for g in range(3):
        a(f"s_waitcnt lgkmcnt({7 - 3*g})")
        for r in range(12):
            a(f"v_add_f32 v{OA+r}, v{OA+r}, v{SB+12*g+r}")
    a(f"""
    v_mov_b32 v13, v{OA+8}
    v_mov_b32 v14, v{OA+8}
    v_maximum3_f32 v15, |v{OA}|, |v{OA+1}|, |v{OA+2}|
    v_maximum3_f32 v15, v15, |v{OA+3}|, |v{OA+4}|
    v_permlane32_swap_b32 v13, v14
    v_maximum3_f32 v15, v15, |v{OA+5}|, |v{OA+6}|
    v_maximum3_f32 v15, v15, |v{OA+7}|, |v{OA+8}|
    v_maximum3_f32 v15, v15, |v{OA+9}|, |v{OA+10}|
    v_maximum3_f32 v15, v15, |v{OA+11}|, |v{OA+11}|
    s_mov_b32 s52, 0x71800000
    s_mov_b32 s53, 0x2b800000
    v_cmp_nge_f32 vcc, s52, v15
    v_cmp_nle_f32 s[58:59], s53, v14
    s_nop 0
    s_or_b64 vcc, vcc, s[58:59]
    s_cbranch_vccnz L_att_fallback
L_att_norm:
    v_rcp_f32 v14, v14
    s_nop 0
    """)
    for r in range(12):
        a(f"v_mul_f32 v{OA+r}, v14, v{OA+r}")
    for i in range(4):
        a(f"v_cvt_pk_bf16_f32 v{SB+36+i}, v{OA+2*i}, v{OA+2*i+1}")
    a(f"""
    v_cvt_pk_bf16_f32 v{SB+42}, v{OA+8}, v{OA+9}
    v_cvt_pk_bf16_f32 v{SB+43}, v{OA+10}, v{OA+11}
    v_permlane32_swap_b32 v{SB+36}, v{SB+38}
    v_permlane32_swap_b32 v{SB+37}, v{SB+39}
    buffer_store_dwordx4 {vr(SB+36,4)}, v{V_K1}, s[20:23], s54 offen {st}
    s_mov_b32 exec_hi, 0
    s_cmp_eq_u32 s43, 0
    s_cbranch_scc1 L_att_teamA
    s_waitcnt lgkmcnt(0)
    buffer_store_dwordx4 {vr(SB+40,4)}, v{V_K2}, s[20:23], s54 offen {st}
    s_mov_b64 exec, -1
    s_branch L_att_done
L_att_teamA:
    ds_write_b64 v12, {vr(SB+42,2)}
    s_mov_b64 exec, -1
    s_waitcnt lgkmcnt(0)
    s_barrier
    s_branch L_att_done
    """)
    k1, k2, v0, v1 = kvb(0)
    sf = SB + 48
    mm = [f"v_mfma_f32_32x32x8_bf16 {vr(sf,16)}, {vr(k2,2)}, {vr(Q2,2)}, 0",
          f"v_mfma_f32_32x32x16_bf16 {vr(sf,16)}, {vr(k1,4)}, {vr(Q1,4)}, {vr(sf,16)}"]
    a(f"""
L_att_fallback:
    v_mov_b32 v15, 0xff800000
    s_mov_b32 s49, {KK}
L_att_fb1:
    {kv_load(0, 0, 49)}
    {kv_load(0, 1, 49)}
    s_waitcnt vmcnt(0)
    {mm[0]}
    {mm[1]}
    s_nop 11
    """)
    for r in range(0, 16, 2):
        a(f"v_max3_f32 v15, v15, v{sf+r}, v{sf+r+1}")
    a(f"""
    s_add_u32 s49, s49, {KVSTRIDE}
    s_cmp_lt_u32 s49, {KK + 64*KVSTRIDE}
    s_cbranch_scc1 L_att_fb1
    v_mov_b32 v13, v15
    s_mov_b32 s49, {KK}
    s_nop 0
    v_permlane32_swap_b32 v13, v15
    v_max_f32 v15, v13, v15
    """)
    for i in range(0, 16, 2):
        a(f"v_mov_b64 {vr(OA+i,2)}, 0")
    a("L_att_fb2:")
    for pc in range(4): a(kv_load(0, pc, 49))
    a(f"s_waitcnt vmcnt(0)\n{mm[0]}\n{mm[1]}\ns_nop 11")
    for r in range(16):
        a(f"v_sub_f32 v{sf+r}, v{sf+r}, v15")
    for r in range(16):
        a(f"v_exp_f32 v{sf+r}, v{sf+r}")
    a(f"""
    s_nop 1
    v_smfmac_f32_32x32x32_bf16 {vr(OA,16)}, {vr(v0,4)}, {vr(sf,8)}, v{V_IDX}
    v_smfmac_f32_32x32x32_bf16 {vr(OA,16)}, {vr(v1,4)}, {vr(sf+8,8)}, v{V_IDX}
    s_add_u32 s49, s49, {KVSTRIDE}
    s_cmp_lt_u32 s49, {KK + 64*KVSTRIDE}
    s_cbranch_scc1 L_att_fb2
    s_nop 8
    v_mov_b32 v13, v{OA+8}
    v_mov_b32 v14, v{OA+8}
    s_nop 1
    v_permlane32_swap_b32 v13, v14
    s_branch L_att_norm
L_att_done:
    """)

def gen_attn(a, name="attn_kernel"):
    a.begin(name)
    a.srd(20, "ws")
    a(f"""
    s_cmp_ge_u32 s2, 256
    s_cbranch_scc1 L_att_end
    v_lshrrev_b32 v2, 6, v0
    v_and_b32 v1, 63, v0
    v_readfirstlane_b32 s40, v2
    s_bfe_u32 s41, s2, 0x40003
    s_and_b32 s42, s2, 7
    s_lshl_b32 s42, s42, 1
    s_lshr_b32 s43, s2, 7
    s_add_u32 s42, s42, s43
    """)
    attn_setup(a)
    a("s_waitcnt lgkmcnt(0)")
    attn_main(a)
    a("L_att_end:\ns_endpgm")
    return dict(name=name, grid=256, block=512, lds=ATT_LDS, vgpr=224)
```

```python
from gcommon import *
from k_g128 import *
import k_g80

UBR = 112
AUG = 128

def split_hi_lo(a, src, hi, lo):
    a(f"""
    v_cvt_pk_bf16_f32 v{hi}, v{src}, v{src}
    v_and_b32 v{lo}, 0xffff0000, v{hi}
    v_sub_f32 v{lo}, v{src}, v{lo}
    v_cvt_pk_bf16_f32 v{lo}, v{lo}, 0
    """)

def ub_load(a):
    a(f"""
    v_lshrrev_b32 v14, 5, v1
    v_mul_u32_u24 v14, {1792*4}, v14
    v_and_b32 v15, 31, v1
    v_lshl_add_u32 v14, v15, 2, v14
    s_lshl_b32 s58, s42, 9
    s_add_u32 s58, s58, {UB}
    """)
    for t in range(4):
        a(f"buffer_load_dword v{UBR+8+t}, v14, s[20:23], s58 offen offset:{128*t}")

def aug_prepare(a, src):
    k_g80.stats_finish(a, src, 2, 3)
    a(f"""
    v_cmp_gt_u32 vcc, 32, v1
    v_sub_f32 v2, 0, v2
    s_nop 0
    v_cndmask_b32 v2, v3, v2, vcc
    """)
    split_hi_lo(a, 2, 3, 10)
    a(f"""
    v_and_b32 v{AUG+1}, 0xffff, v3
    v_lshl_or_b32 v{AUG}, v10, 16, v{AUG+1}
    """)
    for t in range(4):
        split_hi_lo(a, UBR+8+t, UBR+2*t, UBR+2*t+1)

def ffn1_epilogue(a, tag, st=""):
    for t in range(4):
        d = vr(ACC+16*t, 16)
        a(f"v_mfma_f32_32x32x8_bf16 {d}, {vr(UBR+2*t,2)}, {vr(AUG,2)}, {d}")
    a(f"""
    s_mul_i32 s55, s52, {PT1728}
    s_add_u32 s55, s55, {FF}
    s_lshl_b32 s56, s42, 13
    s_add_u32 s55, s55, s56
    s_add_u32 s56, s55, 4096
    v_lshlrev_b32 v2, 4, v1
    s_nop 2
    """)
    for t in range(4):
        if t == 2:
            a(f"s_cmp_eq_u32 s42, 13\ns_cbranch_scc1 L_{tag}_half")
        d = 80 + 8*t
        pack_tile(a, t, d, relu=True)
        for q in range(2):
            a(f"buffer_store_dwordx4 {vr(d+4*q, 4)}, v2, s[20:23], s{55 + t//2} offen offset:{2048*(t%2) + 1024*q} {st}")
    a(f"L_{tag}_half:")

def gen_ffn1(a, name="ffn1_kernel"):
    a.begin(name)
    a.srd(20, "ws")
    a.srd(8, "w1")
    a(f"""
    s_cmp_ge_u32 s2, 224
    s_cbranch_scc1 L_ffn1_end
    v_lshrrev_b32 v2, 6, v0
    v_and_b32 v1, 63, v0
    v_readfirstlane_b32 s40, v2
    s_bfe_u32 s41, s2, 0x20001
    s_lshl_b32 s41, s41, 2
    s_bfe_u32 s44, s2, 0x20003
    s_add_u32 s41, s41, s44
    s_and_b32 s42, s2, 1
    s_mul_i32 s42, s42, 7
    s_lshr_b32 s44, s2, 5
    s_add_u32 s42, s42, s44
    s_mov_b32 s43, 3456
    s_lshl_b32 s46, s42, 8
    s_cmp_ge_u32 s40, 4
    s_cbranch_scc0 L_ffn1_compute
    """)
    helper_addr(a, 12, 40, 43, 46, 50, 51)
    a("s_waitcnt lgkmcnt(0)")
    for c in range(LOOK):
        dma_chunk(a, c, 8, 12, 50, 51)
    helper_loop(a, 8, 12, 50, 51)
    a(f"""
    s_endpgm
L_ffn1_compute:
    s_lshl_b32 s52, s41, 2
    s_add_u32 s52, s52, s40
    s_mul_i32 s53, s52, {PT640}
    s_add_u32 s53, s53, {YY}
    s_lshl_b32 s57, s52, 12
    s_add_u32 s57, s57, {STATS}
    v_lshlrev_b32 v{V_AOFF}, 4, v1
    """)
    k_g80.stats_addr(a)
    a("s_waitcnt lgkmcnt(0)")
    k_g80.stats_load(a, 16, 57)
    ub_load(a)
    for s in range(NXA):
        for l in a_load(s, 20, 53): a(l)
    compute_addr(a)
    a(f"s_waitcnt vmcnt({NXA})")
    aug_prepare(a, 16)
    a("s_barrier")
    loop_plain(a, 20, 53)
    ffn1_epilogue(a, "f1")
    a("L_ffn1_end:\ns_endpgm")
    return dict(name=name, grid=224, block=512, lds=G128_LDS, vgpr=192)
```

```python
from gcommon import *

NSLOT = 8
TAB = NSLOT * 16384
G128_LDS = TAB + 2 * 2560
LOOK = 3
ACC = 16
BF = (80, 96)
TT = (112, 120)
HF = (128, 132)
TMP = 136
XA = 144
NXA = 12
V_BADDR = 4
V_TADDR = 8
V_AOFF = 9

def dma_chunk(a, c, srd, v_off, s_m0, s_row4):
    for i in range(4):
        a(f"s_add_u32 m0, s{s_m0}, {(c % NSLOT) * 16384 + i * 1024}")
        a(f"s_mul_i32 s60, s{s_row4}, {16 * c + i}")
        a(f"buffer_load_dwordx4 v{v_off}, {sr(srd, 4)}, s60 offen lds")

def helper_addr(a, v_off, s_wave, s_stride, s_col, s_m0, s_row4):
    a(f"""
    s_sub_u32 s{s_m0}, s{s_wave}, 4
    v_lshrrev_b32 v10, 4, v1
    s_lshl_b32 s61, s{s_m0}, 4
    v_add_u32 v11, s61, v10
    v_mul_lo_u32 v11, v11, s{s_stride}
    v_lshlrev_b32 v10, 2, v10
    v_xor_b32 v10, v10, v1
    v_and_b32 v10, 15, v10
    v_lshl_add_u32 v11, v10, 4, v11
    v_add_u32 v{v_off}, s{s_col}, v11
    s_lshl_b32 s{s_m0}, s{s_m0}, 12
    s_lshl_b32 s{s_row4}, s{s_stride}, 2
    """)

def helper_loop(a, srd, v_off, s_m0, s_row4, first=0):
    for c in range(first, 10):
        inflight = min(10, c + LOOK) - (c + 1)
        a(f"s_waitcnt vmcnt({4 * inflight})")
        a("s_barrier")
        if c + LOOK < 10:
            dma_chunk(a, c + LOOK, srd, v_off, s_m0, s_row4)

def compute_addr(a):
    a(f"""
    v_bfe_u32 v10, v1, 2, 2
    v_lshrrev_b32 v11, 5, v1
    v_lshl_add_u32 v11, v11, 3, v10
    v_lshlrev_b32 v11, 8, v11
    v_bfe_u32 v12, v1, 4, 1
    v_lshl_add_u32 v11, v12, 5, v11
    v_and_b32 v12, 3, v1
    v_lshl_add_u32 v11, v12, 3, v11
    """)
    for t in range(4):
        a(f"v_xor_b32 v12, {t}, v10")
        a(f"v_lshl_add_u32 v{V_BADDR+t}, v12, 6, v11")

class BAddr:
    def __init__(self):
        self.base = 0
    def reads(self, s, dst):
        off = ((s // 4) % NSLOT) * 16384 + (s % 4) * 4096
        pre = []
        nb = off & ~0xffff
        if nb != self.base:
            d = nb - self.base
            for t in range(4):
                pre.append(f"v_add_u32 v{V_BADDR+t}, {d}, v{V_BADDR+t}" if d > 0 else f"v_subrev_u32 v{V_BADDR+t}, {-d}, v{V_BADDR+t}")
            self.base = nb
        off -= nb
        r = []
        for t in range(4):
            for j in range(2):
                r.append(f"ds_read_b64_tr_b16 {vr(dst + 4*t + 2*j, 2)}, v{V_BADDR+t} offset:{off + 1024*j}")
        return pre, r

def a_load(s, srd, s_abase):
    pre = []
    if s % 4 == 0 and s > 0:
        pre.append(f"s_add_u32 s{s_abase}, s{s_abase}, 4096")
    return pre + [f"buffer_load_dwordx4 {vr(XA + 4*(s % NXA), 4)}, v{V_AOFF}, {sr(srd, 4)}, s{s_abase} offen offset:{1024*(s % 4)}"]

def t_reads(s):
    return [f"ds_read_b128 {vr(TT[s % 2] + 4*j, 4)}, v{V_TADDR} offset:{64*s + 16*j}" for j in range(2)]

def transform(s):
    x, t, h = XA + 4*(s % NXA), TT[s % 2], HF[s % 2]
    f = [f"v_fma_mix_f32 v{TMP+e}, v{x + e//2}, v{t+e}, v{t+e} op_sel:[{e%2},0,1] op_sel_hi:[1,1,1]" for e in range(8)]
    c = [f"v_cvt_pk_bf16_f32 v{h+i}, v{TMP+2*i}, v{TMP+2*i+1}" for i in range(4)]
    return f, c

def mfmas(s, act, w_first):
    out = []
    for t in range(4):
        w = vr(BF[s % 2] + 4*t, 4)
        d = vr(ACC + 16*t, 16)
        p, q = (w, vr(act, 4)) if w_first else (vr(act, 4), w)
        out.append(f"v_mfma_f32_32x32x16_bf16 {d}, {p}, {q}, {d if s > 0 else 0}")
    return out

def loop_transform(a, w_first, srd, s_abase):
    ba = BAddr()
    pre, r = ba.reads(0, BF[0])
    for l in t_reads(0) + t_reads(1) + pre + r: a(l)
    a(f"s_waitcnt vmcnt({NXA-1}) lgkmcnt(10)")
    f, c = transform(0)
    for l in f + c + a_load(NXA, srd, s_abase): a(l)
    for s in range(40):
        nxt = s + 1 < 40
        issued = min(40, s + 1 + NXA)
        a(f"s_waitcnt vmcnt({issued - (s + 2)}) lgkmcnt(0)" if nxt else "s_waitcnt lgkmcnt(0)")
        if nxt and (s + 1) % 4 == 0:
            a("s_barrier")
        m = mfmas(s, HF[s % 2], w_first)
        if not nxt:
            a("s_nop 0")
            for l in m: a(l)
            break
        pre, r = ba.reads(s + 1, BF[(s + 1) % 2])
        tr = t_reads(s + 2) if s + 2 < 40 else []
        f, c = transform(s + 1)
        al = a_load(s + 1 + NXA, srd, s_abase) if s + 1 + NXA < 40 else ["s_nop 0"]
        for l in pre: a(l)
        for l in interleave(m, [r[0:4], r[4:8], tr + f[0:4], f[4:8] + c + al]): a(l)

def loop_plain(a, srd, s_abase, first_barrier=1, extra_vm=0):
    ba = BAddr()
    pre, r = ba.reads(0, BF[0])
    for l in pre + r: a(l)
    for s in range(40):
        nxt = s + 1 < 40
        issued = min(40, s + NXA)
        a(f"s_waitcnt vmcnt({issued - (s + 1)}) lgkmcnt(0)")
        if nxt and (s + 1) % 4 == 0 and (s + 1) // 4 >= first_barrier:
            a("s_barrier")
        m = mfmas(s, XA + 4*(s % NXA), True)
        if not nxt:
            for l in m: a(l)
            break
        pre, r = ba.reads(s + 1, BF[(s + 1) % 2])
        al = a_load(s + NXA, srd, s_abase) if s + NXA < 40 else []
        for l in pre: a(l)
        for l in interleave(m, [r[0:3], r[3:6], r[6:8], al]): a(l)

def pack_tile(a, t, dst, relu=False):
    for i in range(8):
        a(f"v_cvt_pk_bf16_f32 v{dst+i}, v{ACC+16*t+2*i}, v{ACC+16*t+2*i+1}")
    if relu:
        for i in range(8):
            a(f"v_pk_max_i16 v{dst+i}, v{dst+i}, 0")
    a("s_nop 0")
    for q in (0, 4):
        for j in range(2):
            a(f"v_permlane32_swap_b32 v{dst+q+j}, v{dst+q+2+j}")
```

```python
from gcommon import *

RING = 32
XCH = 22 * 5120
PAR = XCH + 4 * 6144
G80_LDS = 163840
ACC = 16
BF = (56, 76)
XA = 96
NA = 8
X1R = 160
XIN = 184
V_B0, V_B1, V_AOFF = 4, 5, 6

def dma_rounds(a, j0, j1, s_base, s_m0):
    for j in range(j0, j1):
        a(f"s_add_u32 m0, s{s_m0}, {(4*j % (5*RING)) * 1024}")
        a(f"s_add_u32 s60, s{s_base}, {4096*j}")
        a(f"buffer_load_dwordx4 v12, s[20:23], s60 offen lds")

def rounds_for(step):
    return (5 * step + 3) // 4

def helper_main(a, nk, bounds, s_base, s_m0, look, issued=0):
    prev = 0
    for b in bounds:
        lim = rounds_for(min(nk, b + look)) if min(nk, b + look) <= prev + RING else (5 * (prev + RING)) // 4
        lim = min(lim, rounds_for(b) + 60)
        if lim > issued:
            dma_rounds(a, issued, lim, s_base, s_m0)
            issued = lim
        assert issued >= rounds_for(b)
        a(f"s_waitcnt vmcnt({issued - rounds_for(b)})")
        a("s_barrier")
        prev = bounds[bounds.index(b) - 1] if bounds.index(b) > 0 else 0

def a_loads(i, s_a):
    pre = [f"s_add_u32 s{s_a}, s{s_a}, 4096"] if i > 0 else []
    return pre + [f"buffer_load_dwordx4 {vr(XA + 8*(i % NA) + 4*mt, 4)}, v{V_AOFF}, s[20:23], s{s_a} offen offset:{256*mt}" for mt in range(2)]

class BAddr:
    def __init__(self):
        self.base = 0
    def reads(self, i, dst):
        off = (2 * i % RING) * 5120
        pre = []
        nb = (off // 51200) * 51200
        if nb != self.base:
            d = nb - self.base
            for r in (V_B0, V_B1):
                pre.append(f"v_add_u32 v{r}, {d}, v{r}" if d > 0 else f"v_subrev_u32 v{r}, {-d}, v{r}")
            self.base = nb
        off -= nb
        return pre, [f"ds_read_b128 {vr(dst + 4*t, 4)}, v{V_B0 if t < 2 else V_B1} offset:{off + 1024*t}" for t in range(5)]

def compute_addr(a):
    a(f"""
    v_lshlrev_b32 v10, 4, v1
    s_mul_i32 s45, s44, {5120 + 3072}
    s_mul_i32 s46, s44, {5120 - 2048}
    v_add_u32 v{V_B0}, s45, v10
    v_add_u32 v{V_B1}, s46, v10
    v_lshrrev_b32 v11, 4, v1
    v_and_b32 v12, 15, v1
    v_lshlrev_b32 v12, 4, v12
    v_lshl_add_u32 v{V_AOFF}, v11, 9, v12
    """)

def compute_loop(a, nk, bounds, s_a, skip_barriers=0):
    n = nk // 2
    ba = BAddr()
    nb = 0
    def bar(i):
        nonlocal nb
        while (bounds[nb - 1] if nb > 0 else 0) <= 2 * i + 1:
            if nb >= skip_barriers: a("s_barrier")
            nb += 1
    bar(0)
    pre, r = ba.reads(0, BF[0])
    for l in pre + r: a(l)
    for i in range(n):
        issued = min(n, i + NA)
        a(f"s_waitcnt vmcnt({2 * (issued - (i + 1))}) lgkmcnt(0)")
        m = []
        for t in range(5):
            for mt in range(2):
                d = vr(ACC + 8*t + 4*mt, 4)
                m.append(f"v_mfma_f32_16x16x32_bf16 {d}, {vr(BF[i % 2] + 4*t, 4)}, {vr(XA + 8*(i % NA) + 4*mt, 4)}, {d if i > 0 else 0}")
        if i + 1 < n:
            bar(i + 1)
            pre, r = ba.reads(i + 1, BF[(i + 1) % 2])
        else:
            pre, r = [], []
        for l in pre: a(l)
        for l in interleave(m, [[x] for x in r]): a(l)
        if i + NA < n:
            for l in a_loads(i + NA, s_a): a(l)
    assert nb == len(bounds)

def exchange(a, tag):
    a(f"""
    s_mul_i32 s45, s40, 6144
    s_xor_b32 s46, s40, 2
    s_mul_i32 s46, s46, 6144
    s_lshl_b32 s47, s44, 11
    s_add_u32 s46, s46, s47
    s_add_u32 s45, s45, {XCH}
    s_add_u32 s46, s46, {XCH}
    v_lshlrev_b32 v10, 4, v1
    v_add_u32 v11, s46, v10
    v_add_u32 v10, s45, v10
    """)
    for q in range(6):
        a(f"ds_write_b128 v10, {vr(ACC + 16 + 4*q, 4)} offset:{1024*q}")
    a(f"""
    v_lshrrev_b32 v12, 5, v1
    s_mul_i32 s45, s44, 192
    s_add_u32 s45, s45, {PAR}
    v_lshl_add_u32 v12, v12, 5, s45
    s_waitcnt lgkmcnt(0)
    s_barrier
    """)
    for q in range(6):
        a(f"ds_read_b128 {vr(BF[0] + 4*q, 4)}, v11 offset:{1024*q}")

def reduce_tile(a, t):
    for r in range(8):
        a(f"v_add_f32 v{ACC+8*t+r}, v{ACC+8*t+r}, v{BF[0]+8*t+r}")
    for r in range(4):
        if r == 3: a("s_nop 0")
        a(f"v_permlane16_swap_b32 v{ACC+8*t+r}, v{ACC+8*t+4+r}")

def mod_value(a, r, plus1):
    a(f"""
    v_add_f32 v{r}, v{r}, v{r+1}
    v_add_f32 v{r+2}, v{r+2}, v{r+3}
    v_add_f32 v{r}, v{r}, v{r+2}
    v_cvt_pk_bf16_f32 v{r}, v{r}, v{r}
    v_and_b32 v{r}, 0xffff0000, v{r}
    """)
    if plus1:
        a(f"""
        v_add_f32 v{r}, 1.0, v{r}
        v_cvt_pk_bf16_f32 v{r}, v{r}, v{r}
        v_and_b32 v{r}, 0xffff0000, v{r}
        """)

def stats_load(a, dst, s_off):
    for i in range(8):
        a(f"buffer_load_dwordx2 {vr(dst + 2*i, 2)}, v13, s[20:23], s{s_off} offen offset:{256*i}")

def stats_addr(a):
    a("""
    v_lshrrev_b32 v14, 5, v1
    v_and_b32 v13, 31, v1
    v_lshlrev_b32 v13, 3, v13
    v_lshl_add_u32 v13, v14, 11, v13
    """)

def stats_finish(a, src, mean, std):
    for i in range(1, 8):
        a(f"v_add_f32 v{src}, v{src}, v{src+2*i}")
        a(f"v_add_f32 v{src+1}, v{src+1}, v{src+2*i+1}")
    a(f"""
    v_mov_b32 v{src+2}, v{src}
    v_mov_b32 v{src+3}, v{src+1}
    s_nop 0
    v_permlane32_swap_b32 v{src}, v{src+2}
    v_permlane32_swap_b32 v{src+1}, v{src+3}
    v_add_f32 v{src}, v{src}, v{src+2}
    v_add_f32 v{src+1}, v{src+1}, v{src+3}
    v_mul_f32 v{mean}, 0x3acccccd, v{src}
    v_mul_f32 v{src+1}, 0x3acccccd, v{src+1}
    v_fma_f32 v{src+1}, -v{mean}, v{mean}, v{src+1}
    v_max_f32 v{src+1}, 0, v{src+1}
    v_add_f32 v{src+1}, 0x3727c5ac, v{src+1}
    v_sqrt_f32 v{std}, v{src+1}
    """)

def head(a, name, extra):
    a.begin(name)
    a.srd(20, "ws")
    a.srd(24, extra)
    a(f"""
    s_cmp_ge_u32 s2, 256
    s_cbranch_scc1 L_{name}_end
    v_lshrrev_b32 v2, 6, v0
    v_and_b32 v1, 63, v0
    v_readfirstlane_b32 s40, v2
    s_and_b32 s41, s2, 7
    s_lshl_b32 s41, s41, 2
    s_lshr_b32 s42, s2, 6
    s_add_u32 s41, s41, s42
    s_bfe_u32 s42, s2, 0x30003
    s_and_b32 s43, s40, 1
    s_bfe_u32 s44, s40, 0x10001
    s_lshl_b32 s48, s41, 1
    s_add_u32 s48, s48, s43
    s_cmp_ge_u32 s40, 4
    s_cbranch_scc0 L_{name}_compute
    """)

def helper_common(a, wbase, sl, cols):
    a(f"""
    s_sub_u32 s50, s40, 4
    s_lshl_b32 s50, s50, 10
    v_lshlrev_b32 v12, 4, v1
    v_add_u32 v12, s50, v12
    s_mul_i32 s51, s42, {sl}
    s_add_u32 s51, s51, {wbase}
    v_min_u32 v13, {79*16}, v12
    s_mul_i32 s52, s42, 1280
    s_waitcnt lgkmcnt(0)
    """)
    for i, (c, _) in enumerate(cols):
        a(f"s_add_u32 s53, s52, {c*16}")
        a(f"buffer_load_dwordx4 {vr(16+4*i,4)}, v13, s[20:23], s53 offen")

def helper_params(a, cols):
    for i, (_, p1) in enumerate(cols):
        mod_value(a, 16 + 4*i, p1)
    a(f"v_lshrrev_b32 v13, 2, v13\nv_add_u32 v13, {PAR}, v13")
    for i in range(len(cols)):
        a(f"ds_write_b32 v13, v{16+4*i} offset:{320*i}")
    a("s_waitcnt lgkmcnt(0)\ns_barrier")

def row_addr(a):
    a(f"""
    v_and_b32 v10, 31, v1
    v_mul_u32_u24 v7, 1280, v10
    v_lshrrev_b32 v10, 5, v1
    v_lshl_add_u32 v7, v10, 4, v7
    s_mul_i32 s54, s48, {32*1280}
    s_mul_i32 s55, s42, 160
    s_add_u32 s54, s54, s55
    s_mul_i32 s55, s44, 96
    s_add_u32 s54, s54, s55
    """)

OP_BOUNDS = [4, 12, 20]
OP_COLS = [(2*640, False), (4*640, True)]

def oproj_epilogue(a, tag, st="", keep_x1=False):
    exchange(a, tag)
    a(f"""
    s_mul_i32 s55, s48, {PT640}
    s_mul_i32 s56, s42, 5120
    s_add_u32 s55, s55, s56
    s_mul_i32 s56, s44, 3072
    s_add_u32 s55, s55, s56
    s_add_u32 s55, s55, {YY}
    v_lshlrev_b32 v2, 4, v1
    v_mov_b32 v8, 0
    v_mov_b32 v9, 0
    """)
    P = XA
    for t in range(3):
        if t == 2:
            a(f"s_cmp_eq_u32 s44, 1\ns_cbranch_scc1 L_{tag}_two")
        for j in range(2):
            a(f"ds_read_b128 {vr(P+4*j,4)}, v12 offset:{64*t + 16*j}")
            a(f"ds_read_b128 {vr(P+8+4*j,4)}, v12 offset:{320 + 64*t + 16*j}")
        a("s_waitcnt lgkmcnt(4)")
        reduce_tile(a, t)
        x1 = X1R + 8*t
        for i in range(4):
            a(f"v_lshlrev_b32 v{x1+2*i}, 16, v{XIN+4*t+i}")
            a(f"v_and_b32 v{x1+2*i+1}, 0xffff0000, v{XIN+4*t+i}")
        a("s_waitcnt lgkmcnt(0)")
        for r in range(8):
            a(f"v_fmac_f32 v{x1+r}, v{P+r}, v{ACC+8*t+r}")
        for r in range(8):
            a(f"v_mul_f32 v{ACC+8*t+r}, v{P+8+r}, v{x1+r}")
        for i in range(4):
            a(f"v_cvt_pk_bf16_f32 v{ACC+8*t+i}, v{ACC+8*t+2*i}, v{ACC+8*t+2*i+1}")
        a(f"buffer_store_dwordx4 {vr(ACC+8*t,4)}, v2, s[20:23], s55 offen offset:{1024*t} {st}")
        for r in range(8):
            a(f"v_add_f32 v8, v8, v{x1+r}")
            a(f"v_fmac_f32 v9, v{x1+r}, v{x1+r}")
    a(f"""
L_{tag}_two:
    v_mov_b32 v10, v8
    v_mov_b32 v11, v9
    s_lshl_b32 s55, s48, 12
    s_lshl_b32 s56, s42, 9
    v_permlane32_swap_b32 v8, v10
    v_permlane32_swap_b32 v9, v11
    s_add_u32 s55, s55, s56
    s_lshl_b32 s56, s44, 8
    s_add_u32 s55, s55, s56
    s_add_u32 s55, s55, {STATS}
    v_add_f32 v8, v8, v10
    v_add_f32 v9, v9, v11
    v_lshlrev_b32 v3, 3, v1
    s_mov_b32 exec_hi, 0
    buffer_store_dwordx2 v[8:9], v3, s[20:23], s55 offen {st}
    s_mov_b32 exec_hi, -1
    """)

def x1_mem(a, op):
    a(f"""
    s_lshl_b32 s55, s2, 2
    s_add_u32 s55, s55, s40
    s_mul_i32 s55, s55, 6144
    s_add_u32 s55, s55, {X1}
    s_add_u32 s56, s55, 4096
    v_lshlrev_b32 v2, 4, v1
    """)
    for q in range(6):
        a(f"buffer_{op}_dwordx4 {vr(X1R+4*q,4)}, v2, s[20:23], s{55 + q//4} offen offset:{1024*(q%4)}")

def gen_oproj(a, name="oproj_kernel"):
    head(a, name, "x")
    helper_common(a, WOF, SL_WO, OP_COLS)
    helper_main(a, 20, OP_BOUNDS, 51, 50, 12)
    helper_params(a, OP_COLS)
    a(f"s_endpgm\nL_{name}_compute:")
    compute_addr(a)
    row_addr(a)
    a(f"""
    s_mul_i32 s49, s48, {PT640}
    s_lshl_b32 s45, s44, 11
    s_add_u32 s49, s49, s45
    s_add_u32 s49, s49, {OO}
    s_waitcnt lgkmcnt(0)
    """)
    for t in range(3):
        a(f"buffer_load_dwordx4 {vr(XIN+4*t,4)}, v7, s[24:27], s54 offen offset:{32*t}")
    for i in range(NA):
        for l in a_loads(i, 49): a(l)
    compute_loop(a, 20, OP_BOUNDS, 49)
    oproj_epilogue(a, "op")
    x1_mem(a, "store")
    a(f"L_{name}_end:\ns_endpgm")
    return dict(name=name, grid=256, block=512, lds=G80_LDS, vgpr=200)

F2_BOUNDS = [4, 12, 20, 28, 36, 44, 54]
F2_COLS = [(5*640, False)]

def ffn2_epilogue(a, tag):
    exchange(a, tag)
    P = XA
    for t in range(3):
        if t == 2:
            a(f"s_cmp_eq_u32 s44, 1\ns_cbranch_scc1 L_{tag}_two")
        for j in range(2):
            a(f"ds_read_b128 {vr(P+4*j,4)}, v12 offset:{64*t + 16*j}")
        a("s_waitcnt lgkmcnt(2)")
        reduce_tile(a, t)
        x1 = X1R + 8*t
        for r in range(8):
            a(f"v_mul_f32 v{ACC+8*t+r}, v9, v{ACC+8*t+r}")
        a("s_waitcnt lgkmcnt(0)")
        for r in range(8):
            a(f"v_fmac_f32 v{x1+r}, v{P+r}, v{ACC+8*t+r}")
        for i in range(4):
            a(f"v_cvt_pk_bf16_f32 v{ACC+8*t+i}, v{x1+2*i}, v{x1+2*i+1}")
        a(f"buffer_store_dwordx4 {vr(ACC+8*t,4)}, v7, s[24:27], s54 offen offset:{32*t}")
    a(f"L_{tag}_two:")

def gen_ffn2(a, name="ffn2_kernel"):
    head(a, name, "out")
    helper_common(a, W2F, SL_W2, F2_COLS)
    helper_main(a, 54, F2_BOUNDS, 51, 50, 16)
    helper_params(a, F2_COLS)
    a(f"s_endpgm\nL_{name}_compute:")
    compute_addr(a)
    row_addr(a)
    stats_addr(a)
    a(f"""
    s_mul_i32 s49, s48, {PT1728}
    s_lshl_b32 s45, s44, 11
    s_add_u32 s49, s49, s45
    s_add_u32 s49, s49, {FF}
    s_lshl_b32 s57, s48, 12
    s_add_u32 s57, s57, {STATS}
    s_waitcnt lgkmcnt(0)
    """)
    stats_load(a, 16, 57)
    x1_mem(a, "load")
    for i in range(NA):
        for l in a_loads(i, 49): a(l)
    a(f"s_waitcnt vmcnt({2*NA + 6})")
    stats_finish(a, 16, 8, 9)
    a("v_rcp_f32 v9, v9")
    compute_loop(a, 54, F2_BOUNDS, 49)
    ffn2_epilogue(a, "f2")
    a(f"L_{name}_end:\ns_endpgm")
    return dict(name=name, grid=256, block=512, lds=G80_LDS, vgpr=200)
```

```python
from gcommon import *

PREP_LDS_LN = 0
PREP_LDS_G = 11520
PREP_LDS_R0 = 14080
PREP_LDS_R1 = PREP_LDS_R0 + 10752
PREP_LDS = PREP_LDS_R1 + 10752

def wave_sum2(a, r0, r1, t0, t1):
    for ctrl in ("quad_perm:[1,0,3,2]", "quad_perm:[2,3,0,1]", "row_half_mirror", "row_mirror"):
        a("s_nop 0")
        a(f"v_add_f32_dpp v{r0}, v{r0}, v{r0} {ctrl} {DPP_ALL}")
        a(f"v_add_f32_dpp v{r1}, v{r1}, v{r1} {ctrl} {DPP_ALL}")
    for sw in ("v_permlane16_swap_b32", "v_permlane32_swap_b32"):
        a(f"v_mov_b32 v{t0}, v{r0}")
        a(f"v_mov_b32 v{t1}, v{r1}")
        a("s_nop 0")
        a(f"{sw} v{r0}, v{t0}")
        a(f"{sw} v{r1}, v{t1}")
        a(f"v_add_f32 v{r0}, v{r0}, v{t0}")
        a(f"v_add_f32 v{r1}, v{r1}, v{t1}")

def gen_prep(a, name="prep_kernel"):
    a.begin(name)
    a.srd(8, "wmod"); a.srd(12, "c"); a.srd(16, "x"); a.srd(20, "ws")
    a(f"""
    s_load_dwordx2 s[28:29], s[0:1], {ARG['w2']}
    s_load_dwordx2 s[30:31], s[0:1], {ARG['wo']}
    s_cmp_ge_u32 s2, 256
    s_cbranch_scc1 L_prep_end
    v_lshrrev_b32 v2, 6, v0
    v_and_b32 v1, 63, v0
    v_readfirstlane_b32 s40, v2
    s_mul_i32 s41, s2, 1093
    s_lshr_b32 s41, s41, 16
    s_mul_i32 s42, s41, 60
    s_sub_u32 s42, s2, s42
    s_mul_i32 s43, s41, 160
    v_lshrrev_b32 v2, 3, v0
    v_add_u32 v2, s43, v2
    v_mul_u32_u24 v3, 7680, v2
    v_and_b32 v7, 7, v0
    v_lshl_add_u32 v3, v7, 4, v3
    v_lshlrev_b32 v4, 1, v2
    s_lshl_b32 s43, s42, 7
    s_add_u32 s44, s43, {80*7680}
    s_and_b32 s45, s2, 7
    s_lshl_b32 s45, s45, 8
    s_and_b32 s46, s2, 0xf8
    s_add_u32 s46, s45, s46
    s_min_u32 s45, s40, 7
    s_add_u32 s45, s46, s45
    s_mul_i32 s45, s45, 1280
    v_lshlrev_b32 v5, 4, v1
    v_add_u32 v6, 1024, v5
    v_mov_b32 v8, 0x40000000
    v_cmp_gt_u32 vcc, 16, v1
    v_lshlrev_b32 v9, 4, v0
    s_sub_u32 s47, s2, 216
    v_cndmask_b32 v6, v8, v6, vcc
    s_lshl_b32 s47, s47, 1
    s_cmp_lt_u32 s2, 216
    s_cselect_b32 s47, s2, s47
    s_mov_b32 s26, {SIZE['wo']}
    s_mov_b32 s50, {SL_WO}
    s_mov_b32 s51, {WOF}
    s_cselect_b32 s26, {SIZE['w2']}, s26
    s_cselect_b32 s50, {SL_W2}, s50
    s_cselect_b32 s51, {W2F}, s51
    s_mov_b32 s27, 0x20000
    s_mul_i32 s48, s47, 10240
    s_add_u32 s49, s48, 10240
    s_waitcnt lgkmcnt(0)
    buffer_load_ushort v10, v4, s[12:15], 0 offen
    buffer_load_ushort v11, v4, s[12:15], 0 offen offset:160
    buffer_load_dwordx4 v[20:23], v5, s[16:19], s45 offen
    buffer_load_dwordx4 v[24:27], v6, s[16:19], s45 offen
    buffer_load_dwordx4 v[12:15], v3, s[8:11], s43 offen
    buffer_load_dwordx4 v[16:19], v3, s[8:11], s44 offen
    s_cmp_lt_u32 s2, 216
    s_cselect_b32 s24, s28, s30
    s_cselect_b32 s25, s29, s31
    s_cselect_b32 s49, s48, s49
    buffer_load_dwordx4 v[28:31], v9, s[24:27], s48 offen
    buffer_load_dwordx4 v[32:35], v9, s[24:27], s49 offen
    """)
    a(f"""
    v_mov_b32 v36, 0x3f803f80
    v_cmp_gt_u32 vcc, 8, v0
    s_mul_i32 s52, s2, {VPITCH}
    s_add_u32 s52, s52, {VV + 10240}
    v_cndmask_b32 v40, v8, v9, vcc
    v_mov_b32 v37, v36
    v_mov_b32 v38, v36
    v_mov_b32 v39, v36
    v_mov_b32 v44, 0
    v_mov_b32 v45, 0
    v_mov_b32 v46, 0
    v_mov_b32 v47, 0
    s_lshl_b32 s53, s2, 7
    s_add_u32 s53, s53, {FLAGS}
    buffer_store_dwordx4 v[36:39], v40, s[20:23], s52 offen
    buffer_store_dwordx4 v[44:47], v40, s[20:23], s53 offen
    """)
    a(f"""
    v_mul_u32_u24 v41, 52429, v0
    v_lshrrev_b32 v41, 22, v41
    v_lshl_add_u32 v41, v41, 6, v9
    v_bfe_u32 v42, v0, 2, 2
    v_mul_u32_u24 v42, 1344, v42
    v_and_b32 v43, 0x3f0, v0
    v_lshl_add_u32 v42, v43, 1, v42
    v_and_b32 v43, 3, v0
    v_lshl_add_u32 v42, v43, 3, v42
    v_lshrrev_b32 v43, 4, v0
    v_mul_u32_u24 v48, 205, v43
    v_lshrrev_b32 v48, 10, v48
    v_mul_u32_u24 v49, 5, v48
    v_sub_u32 v43, v43, v49
    v_mul_lo_u32 v48, v48, s50
    v_lshl_add_u32 v43, v43, 10, v48
    v_and_b32 v48, 15, v0
    v_lshl_add_u32 v43, v48, 4, v43
    s_lshr_b32 s54, s47, 2
    s_mul_i32 s54, s54, 5120
    s_and_b32 s55, s47, 3
    s_lshl_b32 s55, s55, 8
    s_add_u32 s54, s54, s55
    s_add_u32 s54, s54, s51
    """)
    a("s_waitcnt vmcnt(8)")
    for r in (10, 11):
        a(f"v_lshlrev_b32 v{r}, 16, v{r}")
    for r in (10, 11):
        a(f"v_mul_f32 v{r+40}, 0xbfb8aa3b, v{r}")
    for r in (10, 11):
        a(f"v_exp_f32 v{r+40}, v{r+40}")
    a("s_nop 0")
    for r in (10, 11):
        a(f"v_add_f32 v{r+40}, 1.0, v{r+40}")
    for r in (10, 11):
        a(f"v_rcp_f32 v{r+40}, v{r+40}")
    a("s_nop 0")
    for r in (10, 11):
        a(f"v_mul_f32 v{r}, v{r}, v{r+40}")
    a("v_cvt_pk_bf16_f32 v10, v10, v11")
    a("v_and_b32 v11, 0xffff0000, v10")
    a("v_lshlrev_b32 v10, 16, v10")
    a("""
    s_cmp_ge_u32 s40, 8
    s_cbranch_scc1 L_prep_noln
    s_waitcnt vmcnt(6)
    """)
    for i in range(8):
        a(f"v_lshlrev_b32 v{64+2*i}, 16, v{20+i}")
        a(f"v_and_b32 v{65+2*i}, 0xffff0000, v{20+i}")
    a("v_add_f32 v52, v64, v65")
    a("v_mul_f32 v53, v64, v64")
    a("v_fmac_f32 v53, v65, v65")
    for i in range(2, 16):
        a(f"v_add_f32 v52, v52, v{64+i}")
        a(f"v_fmac_f32 v53, v{64+i}, v{64+i}")
    a("s_nop 0")
    wave_sum2(a, 52, 53, 54, 55)
    a(f"""
    v_mul_f32 v52, 0x3acccccd, v52
    v_mul_f32 v53, 0x3acccccd, v53
    v_fma_f32 v53, -v52, v52, v53
    v_max_f32 v53, 0, v53
    v_add_f32 v53, 0x3727c5ac, v53
    v_rsq_f32 v53, v53
    v_mul_u32_u24 v54, 144, v1
    v_mul_f32 v52, v52, v53
    s_lshl_b32 s55, s40, 4
    v_add_u32 v54, s55, v54
    """)
    for i in range(16):
        a(f"v_fma_f32 v{64+i}, v{64+i}, v53, -v52")
    for i in range(8):
        a(f"v_cvt_pk_f16_f32 v{20+i}, v{64+2*i}, v{65+2*i}")
    a(f"""
    ds_write_b128 v54, v[20:23] offset:{PREP_LDS_LN}
    s_mov_b64 exec, 0xffff
    ds_write_b128 v54, v[24:27] offset:{PREP_LDS_LN + 64*144}
    s_mov_b64 exec, -1
L_prep_noln:
    s_waitcnt vmcnt(4)
    """)
    for i in range(4):
        a(f"v_lshlrev_b32 v{64+2*i}, 16, v{12+i}")
        a(f"v_and_b32 v{65+2*i}, 0xffff0000, v{12+i}")
        a(f"v_lshlrev_b32 v{72+2*i}, 16, v{16+i}")
        a(f"v_and_b32 v{73+2*i}, 0xffff0000, v{16+i}")
    for i in range(8):
        a(f"v_mul_f32 v{64+i}, v10, v{64+i}")
    for i in range(8):
        a(f"v_fmac_f32 v{64+i}, v11, v{72+i}")
    a("s_nop 0")
    for i in range(4):
        a(f"v_permlane32_swap_b32 v{64+i}, v{68+i}")
    for i in range(4):
        a(f"v_add_f32 v{64+i}, v{64+i}, v{68+i}")
    a("s_nop 0")
    for i in range(2):
        a(f"v_permlane16_swap_b32 v{64+i}, v{66+i}")
    for i in range(2):
        a(f"v_add_f32 v{64+i}, v{64+i}, v{66+i}")
    a(f"""
    v_lshrrev_b32 v56, 4, v1
    v_lshlrev_b32 v56, 3, v56
    v_add_f32_dpp v64, v64, v64 row_ror:8 {DPP_ALL}
    v_add_f32_dpp v65, v65, v65 row_ror:8 {DPP_ALL}
    v_lshl_add_u32 v56, v7, 5, v56
    s_lshl_b32 s55, s40, 8
    v_add_u32 v56, s55, v56
    ds_write_b64 v56, v[64:65] offset:{PREP_LDS_G}
    s_waitcnt vmcnt(2)
    ds_write_b128 v41, v[28:31] offset:{PREP_LDS_R0}
    ds_write_b128 v41, v[32:35] offset:{PREP_LDS_R1}
    v_lshrrev_b32 v57, 3, v0
    v_mul_u32_u24 v58, 144, v57
    v_lshl_add_u32 v58, v7, 4, v58
    v_lshlrev_b32 v57, 9, v57
    v_lshl_add_u32 v57, v7, 4, v57
    s_lshr_b32 s56, s46, 5
    s_mul_i32 s56, s56, {PT640}
    s_and_b32 s57, s46, 31
    s_lshl_b32 s57, s57, 4
    s_add_u32 s56, s56, s57
    s_add_u32 s56, s56, {XH}
    v_lshlrev_b32 v59, 2, v1
    s_waitcnt lgkmcnt(0)
    s_barrier
    ds_read_b128 v[20:23], v58 offset:{PREP_LDS_LN}
    ds_read_b64_tr_b16 v[28:29], v42 offset:{PREP_LDS_R0}
    ds_read_b64_tr_b16 v[30:31], v42 offset:{PREP_LDS_R0 + 4*1344}
    ds_read_b64_tr_b16 v[32:33], v42 offset:{PREP_LDS_R1}
    ds_read_b64_tr_b16 v[34:35], v42 offset:{PREP_LDS_R1 + 4*1344}
    s_cmp_eq_u32 s40, 9
    s_cbranch_scc0 L_prep_nog
    s_cmp_ge_u32 s2, 240
    s_cbranch_scc1 L_prep_nog
    """)
    for i in range(10):
        a(f"ds_read_b32 v{64+i}, v59 offset:{PREP_LDS_G + 256*i}")
    a(f"""
    s_lshl_b32 s58, s42, 10
    s_lshl_b32 s59, s41, 2
    s_add_u32 s58, s58, s59
    s_waitcnt lgkmcnt(0)
    """)
    for i in range(1, 10):
        a(f"v_add_f32 v64, v64, v{64+i}")
    a(f"""
    buffer_store_dword v64, v5, s[20:23], s58 offen
L_prep_nog:
    s_waitcnt lgkmcnt(0)
    buffer_store_dwordx4 v[20:23], v57, s[20:23], s56 offen
    buffer_store_dwordx4 v[28:31], v43, s[20:23], s54 offen
    s_cmp_lt_u32 s2, 216
    s_cbranch_scc1 L_prep_end
    buffer_store_dwordx4 v[32:35], v43, s[20:23], s54 offen offset:256
L_prep_end:
    s_endpgm
    """)
    return dict(name=name, grid=256, block=640, lds=PREP_LDS, vgpr=80)
```

```python
from gcommon import *
from k_g128 import *
import struct, math
QSCALE = struct.unpack("<I", struct.pack("<f", math.log2(math.e) / math.sqrt(DH)))[0]

def table_entry(a, r, v_addr):
    a(f"""
    v_add_f32 v{r}, v{r}, v{r+1}
    v_add_f32 v{r+2}, v{r+2}, v{r+3}
    v_add_f32 v{r+4}, v{r+4}, v{r+5}
    v_add_f32 v{r+6}, v{r+6}, v{r+7}
    v_add_f32 v{r}, v{r}, v{r+2}
    v_add_f32 v{r+4}, v{r+4}, v{r+6}
    v_cvt_pk_bf16_f32 v{r}, v{r}, v{r+4}
    v_and_b32 v{r+4}, 0xffff0000, v{r}
    v_lshlrev_b32 v{r}, 16, v{r}
    v_add_f32 v{r+4}, 1.0, v{r+4}
    v_cvt_pk_bf16_f32 v{r+4}, v{r+4}, v{r+4}
    v_and_b32 v{r+4}, 0xffff0000, v{r+4}
    v_mul_f32 v{r}, s48, v{r}
    v_mul_f32 v{r+4}, s48, v{r+4}
    v_cvt_pk_f16_f32 v{r}, v{r+4}, v{r}
    v_cvt_pk_f16_f32 v{r+4}, v{r+4}, v{r+4}
    ds_write_b32 v{v_addr}, v{r}
    ds_write_b32 v{v_addr}, v{r+4} offset:2560
    """)

def gen_qkv(a, name="qkv_kernel"):
    a.begin(name)
    a.srd(20, "ws")
    a(f"""
    s_load_dwordx2 s[28:29], s[0:1], {ARG['wqkv']}
    s_load_dwordx2 s[30:31], s[0:1], {ARG['w1']}
    s_cmp_ge_u32 s2, 256
    s_cbranch_scc1 L_qkv_end
    v_lshrrev_b32 v2, 6, v0
    v_and_b32 v1, 63, v0
    v_readfirstlane_b32 s40, v2
    s_bfe_u32 s41, s2, 0x20001
    s_lshl_b32 s41, s41, 2
    s_bfe_u32 s44, s2, 0x20003
    s_add_u32 s41, s41, s44
    s_and_b32 s42, s2, 1
    s_lshl_b32 s42, s42, 3
    s_lshr_b32 s44, s2, 5
    s_add_u32 s42, s42, s44
    s_cmp_eq_u32 s42, 15
    s_cselect_b32 s45, 1, 0
    s_cselect_b32 s44, s41, 0
    s_cmp_ge_u32 s44, 14
    s_cbranch_scc1 L_qkv_end
    s_mov_b32 s48, 1.0
    s_cmp_lt_u32 s42, 5
    s_cselect_b32 s48, {QSCALE}, s48
    s_cmp_eq_u32 s45, 1
    s_mov_b32 s43, 3840
    s_mov_b32 s10, {SIZE['wqkv']}
    s_cselect_b32 s43, 3456, s43
    s_cselect_b32 s10, {SIZE['w1']}, s10
    s_cselect_b32 s46, s41, s42
    s_cselect_b32 s47, {1920*16}, 0
    s_mov_b32 s11, 0x20000
    s_lshl_b32 s46, s46, 8
    s_add_u32 s49, s47, {640*16}
    v_lshlrev_b32 v2, 4, v0
    v_lshlrev_b32 v3, 2, v0
    v_add_u32 v3, {TAB}, v3
    s_waitcnt lgkmcnt(0)
    buffer_load_dwordx4 v[16:19], v2, s[20:23], s47 offen
    buffer_load_dwordx4 v[20:23], v2, s[20:23], s49 offen
    s_cmp_eq_u32 s45, 1
    s_cselect_b32 s8, s30, s28
    s_cselect_b32 s9, s31, s29
    s_cmp_ge_u32 s40, 4
    s_cbranch_scc0 L_qkv_compute
    """)
    a(f"""
    v_add_u32 v2, {128*16}, v2
    s_cmp_ge_u32 s40, 6
    s_cbranch_scc0 L_qkv_h1
    buffer_load_dwordx4 v[24:27], v2, s[20:23], s47 offen
    buffer_load_dwordx4 v[28:31], v2, s[20:23], s49 offen
L_qkv_h1:
    """)
    helper_addr(a, 12, 40, 43, 46, 50, 51)
    for c in range(LOOK):
        dma_chunk(a, c, 8, 12, 50, 51)
    a(f"s_waitcnt vmcnt({4*LOOK})")
    table_entry(a, 16, 3)
    a(f"""
    s_cmp_ge_u32 s40, 6
    s_cbranch_scc0 L_qkv_h2
    v_add_u32 v3, 512, v3
    """)
    table_entry(a, 24, 3)
    a("L_qkv_h2:\ns_waitcnt lgkmcnt(0)")
    helper_loop(a, 8, 12, 50, 51)
    a("s_endpgm")
    a(f"""
L_qkv_compute:
    s_lshl_b32 s52, s41, 2
    s_add_u32 s52, s52, s40
    s_mul_i32 s53, s52, {PT640}
    s_add_u32 s53, s53, {XH}
    s_lshl_b32 s54, s45, 30
    v_lshlrev_b32 v{V_AOFF}, 4, v1
    v_or_b32 v{V_AOFF}, s54, v{V_AOFF}
    """)
    for s in range(NXA):
        for l in a_load(s, 20, 53): a(l)
    compute_addr(a)
    a(f"""
    s_cmp_eq_u32 s40, 0
    s_cselect_b32 s54, s45, 0
    s_mul_i32 s54, s54, 2560
    s_add_u32 s54, s54, {TAB}
    v_lshrrev_b32 v10, 5, v1
    v_lshlrev_b32 v10, 5, v10
    v_add_u32 v{V_TADDR}, s54, v10
    s_waitcnt vmcnt({NXA})
    """)
    table_entry(a, 16, 3)
    a("""
    s_waitcnt lgkmcnt(0)
    s_barrier
    s_cmp_ge_u32 s42, 10
    s_cbranch_scc1 L_qkv_vloop
    """)
    loop_transform(a, True, 20, 53)
    a(f"""
    s_cmp_lt_u32 s42, 5
    s_mov_b32 s55, {KVSTRIDE}
    s_mov_b32 s56, {KK - 5*16*512}
    s_cselect_b32 s55, {PT640}, s55
    s_cselect_b32 s56, {QQ}, s56
    s_mul_i32 s55, s55, s52
    s_add_u32 s55, s55, s56
    s_lshl_b32 s56, s42, 13
    s_add_u32 s55, s55, s56
    s_add_u32 s56, s55, 4096
    v_lshlrev_b32 v2, 4, v1
    s_nop 1
    """)
    for t in range(4):
        d = 80 + 8*t
        pack_tile(a, t, d)
        for q in range(2):
            a(f"buffer_store_dwordx4 {vr(d+4*q, 4)}, v2, s[20:23], s{55 + t//2} offen offset:{2048*(t%2) + 1024*q}")
    a("s_endpgm")
    a("L_qkv_vloop:")
    loop_transform(a, False, 20, 53)
    a(f"""
    s_cmp_eq_u32 s45, 1
    s_cbranch_scc1 L_qkv_side
    s_mul_i32 s55, s52, {4*VPITCH}
    s_add_u32 s55, s55, {VV - 10*2048}
    s_lshl_b32 s56, s42, 11
    s_add_u32 s55, s55, s56
    s_add_u32 s56, s55, {2*VPITCH}
    v_lshrrev_b32 v2, 5, v1
    v_mul_u32_u24 v2, {VPITCH}, v2
    v_and_b32 v3, 31, v1
    v_lshl_add_u32 v2, v3, 4, v2
    s_nop 0
    """)
    for t in range(4):
        d = 80 + 8*t
        pack_tile(a, t, d)
        for q in range(2):
            a(f"buffer_store_dwordx4 {vr(d+4*q, 4)}, v2, s[20:23], s{55 + q} offen offset:{512*t}")
    a(f"""
    s_endpgm
L_qkv_side:
    s_cmp_ge_u32 s40, 2
    s_cbranch_scc1 L_qkv_end
    s_mul_i32 s55, s40, {1792*4}
    s_lshl_b32 s56, s41, 9
    s_add_u32 s55, s55, s56
    s_add_u32 s55, s55, {UB}
    v_and_b32 v2, 31, v1
    v_lshlrev_b32 v2, 2, v2
    s_nop 5
    """)
    for t in range(4):
        a(f"buffer_store_dword v{ACC+16*t}, v2, s[20:23], s55 offen offset:{128*t}")
    a("L_qkv_end:\ns_endpgm")
    return dict(name=name, grid=256, block=512, lds=G128_LDS, vgpr=192)
```

```python
import re, sys

TRANS = ("v_exp_", "v_log_", "v_rcp_", "v_rsq_", "v_sqrt_", "v_sin_", "v_cos_")
RMW = ("v_fmac_", "v_dot2c_", "v_smfmac_", "v_permlane", "v_writelane")

def regs(op):
    op = op.strip().lstrip("-").replace("abs(", "").replace(")", "").strip("|")
    m = re.fullmatch(r"([vsa])(\d+)", op)
    if m: return {(m.group(1), int(m.group(2)))}
    m = re.fullmatch(r"([vsa])\[(\d+):(\d+)\]", op)
    if m: return {(m.group(1), i) for i in range(int(m.group(2)), int(m.group(3)) + 1)}
    if op == "vcc": return {("s", "vcc")}
    if op in ("vcc_lo", "vcc_hi"): return {("s", "vcc")}
    if op in ("exec", "exec_lo", "exec_hi"): return {("s", "exec")}
    if op == "m0": return {("s", "m0")}
    return set()

class I:
    def __init__(self, text, line):
        self.text, self.line = text, line
        p = text.split(None, 1)
        self.mn = p[0]
        rest = p[1] if len(p) > 1 else ""
        ops = [o.strip() for o in re.split(r",(?![^\[]*\])", rest)] if rest else []
        self.mods = ""
        if ops:
            q = ops[-1].split(None, 1)
            ops[-1] = q[0]
            self.mods = q[1] if len(q) > 1 else ""
        self.ops = ops
        mn = self.mn
        self.mfma = mn.startswith(("v_mfma", "v_smfmac"))
        self.valu = mn.startswith("v_") and not self.mfma
        self.vmem = mn.startswith(("buffer_", "global_"))
        self.ds = mn.startswith("ds_")
        self.smem = mn.startswith(("s_load", "s_memtime", "s_memrealtime", "s_buffer_load"))
        self.salu = mn.startswith("s_") and not self.smem
        self.trans = mn.startswith(TRANS)
        self.dpp = "_dpp" in mn
        self.lds_dma = self.vmem and ("lds" in self.mods.split() or "load_lds" in mn)
        R = [regs(o) for o in ops]
        w, r = set(), set()
        self.srcC = set(); self.srcAB = set(); self.sdata = set()
        if self.mfma:
            w = R[0]
            self.srcAB = R[1] | R[2]
            if mn.startswith("v_smfmac"):
                self.srcC = set(R[0]); self.srcAB |= R[3]
            else:
                self.srcC = R[3]
            r = self.srcAB | self.srcC
            self.passes = 16 if "_2b_" in mn else (8 if "32x32" in mn else 4)
        elif self.valu:
            if mn.startswith("v_permlane") and "swap" in mn:
                w = R[0] | R[1]; r = set(w)
            elif mn.startswith(("v_add_co", "v_sub_co", "v_addc_co", "v_subb_co")):
                w = R[0] | R[1]; r = set().union(*R[2:])
            else:
                w = R[0]; r = set().union(*R[1:]) if len(R) > 1 else set()
                if mn.startswith(RMW) or self.dpp or "UNUSED_PRESERVE" in self.mods or "mixhi" in mn or "mixlo" in mn: r |= R[0]
        elif self.vmem:
            if mn.startswith(("buffer_wbl2", "buffer_inv")):
                pass
            elif self.lds_dma:
                r = set().union(*R) | {("s", "m0")}
            elif "load" in mn:
                w = R[0]; r = set().union(*R[1:])
                if "d16" in mn: r |= R[0]
            elif mn.startswith("buffer_"):
                self.sdata = R[0]; r = set().union(*R)
                if "atomic" in mn and "sc0" in self.mods.split(): w = R[0]
            else:
                if "atomic" in mn and "sc0" in self.mods.split():
                    w = R[0]; r = set().union(*R[1:])
                else:
                    self.sdata = R[1]; r = set().union(*R)
        elif self.ds:
            if mn.startswith(("ds_read", "ds_bpermute", "ds_permute", "ds_swizzle")) or "_rtn_" in mn:
                w = R[0]; r = set().union(*R[1:])
            else:
                r = set().union(*R)
        elif self.smem:
            w = R[0]; r = set().union(*R[1:]) if len(R) > 1 else set()
        elif self.salu:
            if mn.startswith(("s_cmp", "s_bitcmp")):
                r = set().union(*R)
            elif mn.startswith(("s_cbranch_vcc",)):
                r = {("s", "vcc")}
            elif mn.startswith(("s_waitcnt", "s_nop", "s_barrier", "s_branch", "s_cbranch", "s_endpgm", "s_sleep", "s_setprio")):
                pass
            elif R:
                w = set(R[0]); r = set().union(*R[1:]) if len(R) > 1 else set()
                if "saveexec" in mn: w |= {("s", "exec")}
                if mn.startswith(("s_addk", "s_mulk")): r |= R[0]
        self.w, self.r = w, r
        self.states = 1
        if mn == "s_nop": self.states = int(ops[0], 0) + 1

def parse(asm):
    ins, labels = [], {}
    intext = True
    for n, raw in enumerate(asm.splitlines(), 1):
        s = raw.split(";")[0].split("//")[0].strip()
        if not s: continue
        if s.startswith(".section"): intext = False
        if s == ".text": intext = True
        if not intext: continue
        m = re.match(r"^([\w.$]+):\s*(.*)$", s)
        if m:
            labels[m.group(1)] = len(ins); s = m.group(2)
            if not s: continue
        if s.startswith("."): continue
        ins.append(I(s, n))
    return ins, labels

def vonly(x): return {q for q in x if q[0] in "va"}
def sonly(x): return {q for q in x if q[0] == "s"}

def need(p, c):
    n = 0
    if p.valu:
        pv, ps = vonly(p.w), sonly(p.w)
        if c.mfma and pv & c.r: n = max(n, 2)
        if c.valu and c.dpp and pv & c.r: n = max(n, 2)
        if c.mn.startswith("v_permlane") and pv & c.r: n = max(n, 2)
        if c.mn.startswith(("v_readlane", "v_readfirstlane")) and pv & c.r: n = max(n, 1)
        if p.trans and (c.valu and not c.trans) and pv & c.r: n = max(n, 1)
        if p.trans and (c.vmem or c.ds) and pv & c.r: n = max(n, 1)
        if ("dst_sel" in p.mods or "mixhi" in p.mn or "mixlo" in p.mn) and c.valu and pv & (c.r | c.w): n = max(n, 1)
        if p.mn.startswith("v_dot") and pv & (c.r | c.w):
            same_c = c.mn == p.mn and not (pv & (set().union(*[regs(o) for o in c.ops[1:3]])))
            if not same_c: n = max(n, 3)
        if ps:
            if c.valu and ps & c.r: n = max(n, 4 if c.mn.startswith(("v_readlane", "v_writelane")) else 2)
            if c.vmem and ps & c.r: n = max(n, 5)
            if c.salu and ps & c.r: n = max(n, 1)
            if ("s", "exec") in ps and c.mfma: n = max(n, 4)
    if p.mfma:
        k = {4: 0, 8: 1, 16: 2}[p.passes]
        if c.mfma:
            if p.w & c.srcAB: n = max(n, (8, 12, 20)[k])
            if p.w & c.srcC and not (p.w == c.srcC and p.passes == c.passes): n = max(n, (6, 10, 18)[k])
            if p.w & c.w and not (p.w & c.srcC) and p.passes > c.passes: n = max(n, (6, 10, 18)[k])
        elif (c.valu or c.vmem or c.ds) and p.w & (c.r | c.w): n = max(n, (8, 12, 20)[k])
        if c.valu and p.srcC & c.w: n = max(n, (3, 7, 15)[k])
    if p.salu and ("s", "m0") in p.w and c.lds_dma: n = max(n, 1)
    if p.vmem and len(p.sdata) >= 3 and p.sdata & c.w: n = max(n, 2 if c.valu else 1)
    return n

def check(asm, entries, verbose=True):
    ins, labels = parse(asm)
    errs = {}
    seen = set()
    stack = [(labels[e], (), (), ()) for e in entries]
    steps = 0
    while stack:
        pc, win, vq, lq = stack.pop()
        win, vq, lq = list(win), list(vq), list(lq)
        while pc < len(ins):
            steps += 1
            if steps > 3_000_000: raise SystemExit("lint: too many steps")
            c = ins[pc]
            d = 0
            for q in reversed(win):
                p = ins[q]
                nn = need(p, c)
                if nn > d: errs[(p.line, c.line)] = f"hazard needs {nn} has {d}: L{p.line} `{p.text}` -> L{c.line} `{c.text}`"
                d += p.states
            for q in vq + lq:
                p = ins[q]
                if p.w & (c.r | c.w) and not (p.w and c.w == p.w and (c.vmem and p.vmem or c.ds and p.ds) and not (p.w & c.r)):
                    errs[(p.line, c.line, "w")] = f"unwaited load: L{p.line} `{p.text}` -> L{c.line} `{c.text}`"
            if c.mn == "s_waitcnt":
                t = c.text
                m = re.search(r"vmcnt\((\d+)\)", t)
                if m:
                    k = int(m.group(1)); vq = vq[len(vq) - k:] if k < len(vq) and k > 0 else ([] if k == 0 else vq)
                m = re.search(r"lgkmcnt\((\d+)\)", t)
                if m:
                    k = int(m.group(1))
                    if k == 0: lq = []
                    elif not any(ins[q].smem for q in lq) and k < len(lq): lq = lq[len(lq) - k:]
            if c.vmem:
                vq.append(pc)
                if len(vq) > 63: errs[(c.line, "vm")] = f"more than 63 vmem outstanding at L{c.line}"
                vq = vq[-64:]
            if c.ds or c.smem:
                lq.append(pc)
                lq = lq[-40:]
            win.append(pc)
            tot = 0; keep = []
            for q in reversed(win):
                keep.append(q); tot += ins[q].states
                if tot >= 21: break
            win = keep[::-1]
            if c.mn == "s_endpgm": break
            if c.mn == "s_branch" or c.mn.startswith("s_cbranch"):
                tgt = labels[c.ops[0]]
                key = (tgt, tuple(win), tuple(vq), tuple(lq))
                if key not in seen:
                    seen.add(key); stack.append(key)
                if c.mn == "s_branch": break
                key = (pc + 1, tuple(win), tuple(vq), tuple(lq))
                if key in seen: break
                seen.add(key)
            pc += 1
    if verbose:
        for k in sorted(errs, key=str): print("LINT:", errs[k])
        print(f"lint: {len(ins)} instructions, {len(errs)} findings")
    return errs

if __name__ == "__main__":
    src = open(sys.argv[1]).read()
    ents = re.findall(r"^\.amdhsa_kernel\s+(\S+)", src, re.M)
    check(src, ents)
```

```python
import sys, re
from gcommon import *
import lint

HEADER = open("cdna_kernels/" + NAME + ".s.ref").read().split("; Override launch")[0]

def build(kernels):
    a = Asm()
    metas = [g(a) for g in kernels]
    out = HEADER
    for m in metas:
        out += f"; @launch kernel={m['name']} grid=({m['grid']},1,1) block=({m['block']},1,1) lds={m['lds']}\n"
    out += '.amdgcn_target "amdgcn-amd-amdhsa--gfx950"\n.text\n' + a.text()
    out += '.section .rodata,"a"\n' + "".join(descriptor(m["name"], m["vgpr"]) for m in metas)
    return out, [m["name"] for m in metas]

def main(path, which="all"):
    from k_prep import gen_prep
    ks = [gen_prep]
    try:
        from k_qkv import gen_qkv
        ks.append(gen_qkv)
        from k_attn import gen_attn
        ks.append(gen_attn)
        from k_g80 import gen_oproj, gen_ffn2
        from k_ffn1 import gen_ffn1
        ks += [gen_oproj, gen_ffn1, gen_ffn2]
    except ImportError as e:
        print("partial build:", e)
    src, names = build(ks)
    open(path, "w").write(src)
    lint.check(src, names)

if __name__ == "__main__":
    main(sys.argv[1] if len(sys.argv) > 1 else "out.s")
```

```python
NAME = "adaLN_cond__mha_block__dense_activation_relu__prompt"
S, D, DFF, H, DH = 2048, 640, 1728, 32, 20

MODP = 0x0
UB = 0x10000
FLAGS = 0x14000
FLAGS_BYTES = 0xc000
STATS = 0x20000
XH = 0x60000
QQ = 0x2E0000
KK = 0x560000
VV = 0x7E8000
OO = 0xA70000
YY = 0xCF0000
FF = 0xF70000
WOF = 0x1630000
W2F = 0x16F8000
X1 = 0x1914000
WS_END = 0x1F14000
KVSTRIDE = 41472
VPITCH = 10368
PT640 = 40960
PT1728 = 110592
SL_WO = 102400
SL_W2 = 276480
OOB = 0x80000000

ARG = dict(x=0, wqkv=8, wo=16, w1=32, w2=40, c=48, wmod=56, out=64, dbg=72, ws=80)
SIZE = dict(x=S * D * 2, wqkv=D * 3 * D * 2, wo=D * D * 2, w1=D * DFF * 2, w2=DFF * D * 2, c=D * 2,
            wmod=D * 6 * D * 2, out=S * D * 2, dbg=256, ws=WS_END)

def vr(i, n=1):
    return f"v{i}" if n == 1 else f"v[{i}:{i+n-1}]"

def sr(i, n=1):
    return f"s{i}" if n == 1 else f"s[{i}:{i+n-1}]"

DPP_ALL = "row_mask:0xf bank_mask:0xf"

class Asm:
    def __init__(self):
        self.lines = []
    def __call__(self, text):
        for l in text.split("\n"):
            l = l.strip()
            if not l:
                continue
            self.lines.append(l if (l.endswith(":") or l.startswith(".")) else "    " + l)
    def srd(self, base, name):
        self(f"s_load_dwordx2 {sr(base, 2)}, s[0:1], {ARG[name]}")
        self(f"s_mov_b32 s{base+2}, {SIZE[name]}")
        self(f"s_mov_b32 s{base+3}, 0x20000")
    def begin(self, name):
        self(f".globl {name}\n.p2align 8\n.type {name},@function\n{name}:")
    def text(self):
        return "\n".join(self.lines) + "\n"

def descriptor(name, vgpr, sgpr=96):
    return f""".p2align 6
.amdhsa_kernel {name}
  .amdhsa_next_free_vgpr {vgpr}
  .amdhsa_next_free_sgpr {sgpr}
  .amdhsa_accum_offset {(vgpr + 3) // 4 * 4}
  .amdhsa_group_segment_fixed_size 0
  .amdhsa_kernarg_size 88
  .amdhsa_user_sgpr_count 2
  .amdhsa_user_sgpr_kernarg_segment_ptr 1
  .amdhsa_system_sgpr_workgroup_id_x 1
.end_amdhsa_kernel
"""

def interleave(primary, fillers):
    out = []
    for i, p in enumerate(primary):
        out.append(p)
        if i < len(fillers):
            out += fillers[i]
    return out


class VQ:
    def __init__(self):
        self.q = []
    def push(self, tag, n=1):
        self.q += [tag] * n
    def cnt(self, tag):
        last = max(k for k, t in enumerate(self.q) if t == tag)
        return len(self.q) - 1 - last
```

```python
from gcommon import *

PREP_LDS_LN = 0
PREP_LDS_G = 11520
PREP_LDS_R0 = 14080
PREP_LDS_R1 = PREP_LDS_R0 + 10752
PREP_LDS = PREP_LDS_R1 + 10752

def wave_sum2(a, r0, r1, t0, t1):
    for ctrl in ("quad_perm:[1,0,3,2]", "quad_perm:[2,3,0,1]", "row_half_mirror", "row_mirror"):
        a("s_nop 0")
        a(f"v_add_f32_dpp v{r0}, v{r0}, v{r0} {ctrl} {DPP_ALL}")
        a(f"v_add_f32_dpp v{r1}, v{r1}, v{r1} {ctrl} {DPP_ALL}")
    for sw in ("v_permlane16_swap_b32", "v_permlane32_swap_b32"):
        a(f"v_mov_b32 v{t0}, v{r0}")
        a(f"v_mov_b32 v{t1}, v{r1}")
        a("s_nop 0")
        a(f"{sw} v{r0}, v{t0}")
        a(f"{sw} v{r1}, v{t1}")
        a(f"v_add_f32 v{r0}, v{r0}, v{t0}")
        a(f"v_add_f32 v{r1}, v{r1}, v{t1}")

def gen_prep(a, name="prep_kernel"):
    a.begin(name)
    a.srd(8, "wmod"); a.srd(12, "c"); a.srd(16, "x"); a.srd(20, "ws")
    a(f"""
    s_load_dwordx2 s[28:29], s[0:1], {ARG['w2']}
    s_load_dwordx2 s[30:31], s[0:1], {ARG['wo']}
    s_cmp_ge_u32 s2, 256
    s_cbranch_scc1 L_prep_end
    v_lshrrev_b32 v2, 6, v0
    v_and_b32 v1, 63, v0
    v_readfirstlane_b32 s40, v2
    s_mul_i32 s41, s2, 1093
    s_lshr_b32 s41, s41, 16
    s_mul_i32 s42, s41, 60
    s_sub_u32 s42, s2, s42
    s_mul_i32 s43, s41, 160
    v_lshrrev_b32 v2, 3, v0
    v_add_u32 v2, s43, v2
    v_mul_u32_u24 v3, 7680, v2
    v_and_b32 v7, 7, v0
    v_lshl_add_u32 v3, v7, 4, v3
    v_lshlrev_b32 v4, 1, v2
    s_lshl_b32 s43, s42, 7
    s_add_u32 s44, s43, {80*7680}
    s_and_b32 s45, s2, 7
    s_lshl_b32 s45, s45, 8
    s_and_b32 s46, s2, 0xf8
    s_add_u32 s46, s45, s46
    s_min_u32 s45, s40, 7
    s_add_u32 s45, s46, s45
    s_mul_i32 s45, s45, 1280
    v_lshlrev_b32 v5, 4, v1
    v_add_u32 v6, 1024, v5
    v_mov_b32 v8, 0x40000000
    v_cmp_gt_u32 vcc, 16, v1
    v_lshlrev_b32 v9, 4, v0
    s_sub_u32 s47, s2, 216
    v_cndmask_b32 v6, v8, v6, vcc
    s_lshl_b32 s47, s47, 1
    s_cmp_lt_u32 s2, 216
    s_cselect_b32 s47, s2, s47
    s_mov_b32 s26, {SIZE['wo']}
    s_mov_b32 s50, {SL_WO}
    s_mov_b32 s51, {WOF}
    s_cselect_b32 s26, {SIZE['w2']}, s26
    s_cselect_b32 s50, {SL_W2}, s50
    s_cselect_b32 s51, {W2F}, s51
    s_mov_b32 s27, 0x20000
    s_mul_i32 s48, s47, 10240
    s_add_u32 s49, s48, 10240
    s_waitcnt lgkmcnt(0)
    buffer_load_ushort v10, v4, s[12:15], 0 offen
    buffer_load_ushort v11, v4, s[12:15], 0 offen offset:160
    buffer_load_dwordx4 v[20:23], v5, s[16:19], s45 offen
    buffer_load_dwordx4 v[24:27], v6, s[16:19], s45 offen
    buffer_load_dwordx4 v[12:15], v3, s[8:11], s43 offen
    buffer_load_dwordx4 v[16:19], v3, s[8:11], s44 offen
    s_cmp_lt_u32 s2, 216
    s_cselect_b32 s24, s28, s30
    s_cselect_b32 s25, s29, s31
    s_cselect_b32 s49, s48, s49
    buffer_load_dwordx4 v[28:31], v9, s[24:27], s48 offen
    buffer_load_dwordx4 v[32:35], v9, s[24:27], s49 offen
    """)
    a(f"""
    v_mov_b32 v36, 0x3f803f80
    v_cmp_gt_u32 vcc, 8, v0
    s_mul_i32 s52, s2, {VPITCH}
    s_add_u32 s52, s52, {VV + 10240}
    v_cndmask_b32 v40, v8, v9, vcc
    v_mov_b32 v37, v36
    v_mov_b32 v38, v36
    v_mov_b32 v39, v36
    v_mov_b32 v44, 0
    v_mov_b32 v45, 0
    v_mov_b32 v46, 0
    v_mov_b32 v47, 0
    s_lshl_b32 s53, s2, 7
    s_add_u32 s53, s53, {FLAGS}
    buffer_store_dwordx4 v[36:39], v40, s[20:23], s52 offen
    buffer_store_dwordx4 v[44:47], v40, s[20:23], s53 offen
    """)
    a(f"""
    v_mul_u32_u24 v41, 52429, v0
    v_lshrrev_b32 v41, 22, v41
    v_lshl_add_u32 v41, v41, 6, v9
    v_bfe_u32 v42, v0, 2, 2
    v_mul_u32_u24 v42, 1344, v42
    v_and_b32 v43, 0x3f0, v0
    v_lshl_add_u32 v42, v43, 1, v42
    v_and_b32 v43, 3, v0
    v_lshl_add_u32 v42, v43, 3, v42
    v_lshrrev_b32 v43, 4, v0
    v_mul_u32_u24 v48, 205, v43
    v_lshrrev_b32 v48, 10, v48
    v_mul_u32_u24 v49, 5, v48
    v_sub_u32 v43, v43, v49
    v_mul_lo_u32 v48, v48, s50
    v_lshl_add_u32 v43, v43, 10, v48
    v_and_b32 v48, 15, v0
    v_lshl_add_u32 v43, v48, 4, v43
    s_lshr_b32 s54, s47, 2
    s_mul_i32 s54, s54, 5120
    s_and_b32 s55, s47, 3
    s_lshl_b32 s55, s55, 8
    s_add_u32 s54, s54, s55
    s_add_u32 s54, s54, s51
    """)
    a("; @stamp 1\ns_waitcnt vmcnt(8)\n; @stamp 2")
    for r in (10, 11):
        a(f"v_lshlrev_b32 v{r}, 16, v{r}")
    for r in (10, 11):
        a(f"v_mul_f32 v{r+40}, 0xbfb8aa3b, v{r}")
    for r in (10, 11):
        a(f"v_exp_f32 v{r+40}, v{r+40}")
    a("s_nop 0")
    for r in (10, 11):
        a(f"v_add_f32 v{r+40}, 1.0, v{r+40}")
    for r in (10, 11):
        a(f"v_rcp_f32 v{r+40}, v{r+40}")
    a("s_nop 0")
    for r in (10, 11):
        a(f"v_mul_f32 v{r}, v{r}, v{r+40}")
    a("v_cvt_pk_bf16_f32 v10, v10, v11")
    a("v_and_b32 v11, 0xffff0000, v10")
    a("v_lshlrev_b32 v10, 16, v10")
    a("""
    s_cmp_ge_u32 s40, 8
    s_cbranch_scc1 L_prep_noln
    s_waitcnt vmcnt(6)
    ; @stamp 3
    """)
    for i in range(8):
        a(f"v_lshlrev_b32 v{64+2*i}, 16, v{20+i}")
        a(f"v_and_b32 v{65+2*i}, 0xffff0000, v{20+i}")
    a("v_add_f32 v52, v64, v65")
    a("v_mul_f32 v53, v64, v64")
    a("v_fmac_f32 v53, v65, v65")
    for i in range(2, 16):
        a(f"v_add_f32 v52, v52, v{64+i}")
        a(f"v_fmac_f32 v53, v{64+i}, v{64+i}")
    a("s_nop 0")
    wave_sum2(a, 52, 53, 54, 55)
    a(f"""
    v_mul_f32 v52, 0x3acccccd, v52
    v_mul_f32 v53, 0x3acccccd, v53
    v_fma_f32 v53, -v52, v52, v53
    v_max_f32 v53, 0, v53
    v_add_f32 v53, 0x3727c5ac, v53
    v_rsq_f32 v53, v53
    v_mul_u32_u24 v54, 144, v1
    v_mul_f32 v52, v52, v53
    s_lshl_b32 s55, s40, 4
    v_add_u32 v54, s55, v54
    """)
    for i in range(16):
        a(f"v_fma_f32 v{64+i}, v{64+i}, v53, -v52")
    for i in range(8):
        a(f"v_cvt_pk_f16_f32 v{20+i}, v{64+2*i}, v{65+2*i}")
    a(f"""
    ds_write_b128 v54, v[20:23] offset:{PREP_LDS_LN}
    s_mov_b64 exec, 0xffff
    ds_write_b128 v54, v[24:27] offset:{PREP_LDS_LN + 64*144}
    s_mov_b64 exec, -1
L_prep_noln:
    s_waitcnt vmcnt(4)
    ; @stamp 4
    """)
    for i in range(4):
        a(f"v_lshlrev_b32 v{64+2*i}, 16, v{12+i}")
        a(f"v_and_b32 v{65+2*i}, 0xffff0000, v{12+i}")
        a(f"v_lshlrev_b32 v{72+2*i}, 16, v{16+i}")
        a(f"v_and_b32 v{73+2*i}, 0xffff0000, v{16+i}")
    for i in range(8):
        a(f"v_mul_f32 v{64+i}, v10, v{64+i}")
    for i in range(8):
        a(f"v_fmac_f32 v{64+i}, v11, v{72+i}")
    a("s_nop 0")
    for i in range(4):
        a(f"v_permlane32_swap_b32 v{64+i}, v{68+i}")
    for i in range(4):
        a(f"v_add_f32 v{64+i}, v{64+i}, v{68+i}")
    a("s_nop 0")
    for i in range(2):
        a(f"v_permlane16_swap_b32 v{64+i}, v{66+i}")
    for i in range(2):
        a(f"v_add_f32 v{64+i}, v{64+i}, v{66+i}")
    a(f"""
    v_lshrrev_b32 v56, 4, v1
    v_lshlrev_b32 v56, 3, v56
    v_add_f32_dpp v64, v64, v64 row_ror:8 {DPP_ALL}
    v_add_f32_dpp v65, v65, v65 row_ror:8 {DPP_ALL}
    v_lshl_add_u32 v56, v7, 5, v56
    s_lshl_b32 s55, s40, 8
    v_add_u32 v56, s55, v56
    ds_write_b64 v56, v[64:65] offset:{PREP_LDS_G}
    s_waitcnt vmcnt(2)
    ds_write_b128 v41, v[28:31] offset:{PREP_LDS_R0}
    ds_write_b128 v41, v[32:35] offset:{PREP_LDS_R1}
    v_lshrrev_b32 v57, 3, v0
    v_mul_u32_u24 v58, 144, v57
    v_lshl_add_u32 v58, v7, 4, v58
    v_lshlrev_b32 v57, 9, v57
    v_lshl_add_u32 v57, v7, 4, v57
    s_lshr_b32 s56, s46, 5
    s_mul_i32 s56, s56, {PT640}
    s_and_b32 s57, s46, 31
    s_lshl_b32 s57, s57, 4
    s_add_u32 s56, s56, s57
    s_add_u32 s56, s56, {XH}
    v_lshlrev_b32 v59, 2, v1
    s_waitcnt lgkmcnt(0)
    ; @stamp 5
    s_barrier
    ; @stamp 6
    ds_read_b128 v[20:23], v58 offset:{PREP_LDS_LN}
    ds_read_b64_tr_b16 v[28:29], v42 offset:{PREP_LDS_R0}
    ds_read_b64_tr_b16 v[30:31], v42 offset:{PREP_LDS_R0 + 4*1344}
    ds_read_b64_tr_b16 v[32:33], v42 offset:{PREP_LDS_R1}
    ds_read_b64_tr_b16 v[34:35], v42 offset:{PREP_LDS_R1 + 4*1344}
    s_cmp_eq_u32 s40, 9
    s_cbranch_scc0 L_prep_nog
    s_cmp_ge_u32 s2, 240
    s_cbranch_scc1 L_prep_nog
    """)
    for i in range(10):
        a(f"ds_read_b32 v{64+i}, v59 offset:{PREP_LDS_G + 256*i}")
    a(f"""
    s_lshl_b32 s58, s42, 10
    s_lshl_b32 s59, s41, 2
    s_add_u32 s58, s58, s59
    s_waitcnt lgkmcnt(0)
    """)
    for i in range(1, 10):
        a(f"v_add_f32 v64, v64, v{64+i}")
    a(f"""
    buffer_store_dword v64, v5, s[20:23], s58 offen
L_prep_nog:
    s_waitcnt lgkmcnt(0)
    buffer_store_dwordx4 v[20:23], v57, s[20:23], s56 offen
    buffer_store_dwordx4 v[28:31], v43, s[20:23], s54 offen
    s_cmp_lt_u32 s2, 216
    s_cbranch_scc1 L_prep_end
    buffer_store_dwordx4 v[32:35], v43, s[20:23], s54 offen offset:256
L_prep_end:
    s_endpgm
    """)
    return dict(name=name, grid=256, block=640, lds=PREP_LDS, vgpr=80)
```

```python
import re, sys
from gcommon import *
STAMP = 0x3000000

def instrument(src, names):
    out = []
    kidx = -1
    nv = {m.group(1): min(int(m.group(2)), 254) for m in re.finditer(r"amdhsa_kernel (\w+)\s+\.amdhsa_next_free_vgpr (\d+)", src)}
    marks = []
    for line in src.split("\n"):
        s = line.strip()
        m = re.match(r"^(\w+_kernel):$", s)
        if m:
            kidx += 1
            marks.append((len(out), nv[m.group(1)]))
            out.append(line)
            out.append("    s_memrealtime s[90:91]\n    s_memtime s[96:97]")
            out.append("    s_load_dwordx2 s[92:93], s[0:1], 80")
            out.append("    s_mov_b32 s94, 0x4000000\n    s_mov_b32 s95, 0x20000")
            out.append(f"    s_lshl_b32 s89, s2, 11\n    s_add_u32 s89, s89, {STAMP + kidx * 0x100000}")
            out.append("    v_lshrrev_b32 vSA, 6, v0\n    v_lshlrev_b32 vSA, 7, vSA")
            out.append("    s_waitcnt lgkmcnt(0)\n    s_mov_b32 s88, s90")
            continue
        m = re.match(r"^; @s (\w+)", s)
        if m:
            if m.group(1) not in names: continue
            n = names.index(m.group(1)) + 1
            out.append(f"    s_memrealtime s[{64+2*(n-1)}:{65+2*(n-1)}]\n    s_memtime s[98:99]\n    s_waitcnt lgkmcnt(0)\n    s_mov_b32 s{65+2*(n-1)}, s98")
            continue
        if s == "s_endpgm":
            out.append("    s_waitcnt vmcnt(0)\n    s_memrealtime s[90:91]\n    s_memtime s[98:99]\n    s_mov_b64 exec, -1\n    s_waitcnt lgkmcnt(0)")
            out.append("    v_mov_b32 vSB, s88\n    buffer_store_dword vSB, vSA, s[92:95], s89 offen")
            out.append("    s_sub_u32 s98, s98, s96\n    v_mov_b32 vSB, s98\n    buffer_store_dword vSB, vSA, s[92:95], s89 offen offset:60")
            out.append("    v_mov_b32 vSB, s90\n    buffer_store_dword vSB, vSA, s[92:95], s89 offen offset:4")
            for n in range(1, 13):
                out.append(f"    v_mov_b32 vSB, s{64+2*(n-1)}\n    buffer_store_dword vSB, vSA, s[92:95], s89 offen offset:{4+4*n}")
                out.append(f"    v_mov_b32 vSB, s{65+2*(n-1)}\n    buffer_store_dword vSB, vSA, s[92:95], s89 offen offset:{64+4+4*n}")
        out.append(line)
    for i, (pos, n) in enumerate(marks):
        end = marks[i + 1][0] if i + 1 < len(marks) else len(out)
        for j in range(pos, end):
            out[j] = out[j].replace("vSA", f"v{n}").replace("vSB", f"v{n+1}")
    t = "\n".join(out)
    t = re.sub(r"next_free_vgpr (\d+)", lambda m: f"next_free_vgpr {min(256, int(m.group(1)) + 4)}", t)
    t = re.sub(r"accum_offset (\d+)", lambda m: f"accum_offset {min(256, int(m.group(1)) + 4)}", t)
    t = re.sub(r"next_free_sgpr \d+", "next_free_sgpr 102", t)
    return t + "\n; STAMPS " + ",".join(names) + "\n"

if __name__ == "__main__":
    open(sys.argv[2], "w").write(instrument(open(sys.argv[1]).read(), sys.argv[3].split(",")))
```

```python
import sys
from gcommon import *
from stamp import STAMP, instrument
from k_prep import wave_sum2
C_US = 70
AMP = 16

def make(src, names, slot, wave=0):
    st = instrument(src, names)
    a = Asm()
    a.begin("probe_kernel")
    a(f"""
    s_load_dwordx2 s[8:9], s[0:1], 80
    s_mov_b32 s10, 0x4000000
    s_mov_b32 s11, 0x20000
    s_cmp_ge_u32 s2, 1
    s_cbranch_scc1 L_probe_end
    v_mul_u32_u24 v1, {3 * 2048}, v0
    v_add_u32 v1, {STAMP + wave * 128}, v1
    s_waitcnt lgkmcnt(0)
    buffer_load_dword v2, v1, s[8:11], 0 offen offset:{slot * 4} sc0 sc1
    buffer_load_dword v6, v1, s[8:11], 0 offen sc0 sc1
    s_waitcnt vmcnt(0)
    v_readfirstlane_b32 s12, v6
    s_nop 1
    v_subrev_u32 v2, s12, v2
    v_cvt_f32_i32 v2, v2
    v_mov_b32 v3, 0
    s_nop 0
    """)
    wave_sum2(a, 2, 3, 4, 5)
    a(f"""
    v_mul_f32 v2, 0x3e800000, v2
    v_cvt_i32_f32 v2, v2
    s_nop 0
    v_readfirstlane_b32 s13, v2
    s_nop 1
    s_add_u32 s13, s13, {C_US * 100}
    s_mov_b32 s16, 0
L_probe_spin:
    s_memrealtime s[14:15]
    s_add_u32 s16, s16, 1
    s_waitcnt lgkmcnt(0)
    s_sub_u32 s14, s14, s12
    s_cmp_gt_u32 s16, 100000
    s_cbranch_scc1 L_probe_end
    s_cmp_lt_u32 s14, s13
    s_cbranch_scc1 L_probe_spin
L_probe_end:
    s_endpgm
    """)
    l = "; @launch grid=(256,1,1) block=(512,1,1) lds=163840\n"
    k = f"; @launch kernel={NAME}_kernel grid=(256,1,1) block=(512,1,1) lds=163840\n; @launch kernel=probe_kernel grid=(1,1,1) block=(64,1,1) lds=0\n"
    st = st.replace(l, k).replace('.section .rodata,"a"\n', a.text() + '.section .rodata,"a"\n', 1)
    return st + descriptor("probe_kernel", 8, 24)

if __name__ == "__main__":
    for i, spec in enumerate(sys.argv[1:]):
        base, n = spec.split(":")
        src = open(f"v/{base}.s").read()
        real = [] if n in ("start", "end") else [n]
        slot = 0 if n == "start" else 1 if n == "end" else 2
        open(f"v/d{i}.s", "w").write(make(src, real or ["none"], slot))
        print(f"v/d{i}.s <- {spec}; stamp = (T - {C_US} - 11) / {AMP}")
```

```python
NAME = "adaLN_cond__mha_block__dense_activation_relu__prompt"
S, D, DFF, H, DH = 2048, 640, 1728, 32, 20

MODP = 0x0
UB = 0x10000
FLAGS = 0x14000
FLAGS_BYTES = 0xc000
STATS = 0x20000
XH = 0x60000
QQ = 0x2E0000
KK = 0x560000
VV = 0x7E8000
OO = 0xA70000
YY = 0xCF0000
FF = 0xF70000
WOF = 0x1630000
W2F = 0x16F8000
X1 = 0x1914000
NH, NY, NO, NF = 0x2000000, 0x2400000, 0x2800000, 0x2C00000
NSTAT = 0x1C40000
NPROBE = 0x1C80000
NUB = 0x1C88000
NQKV = 0x400000
QKVS = 16 * 16384
WS_END = 0x3400000
S_POL = 99
KVSTRIDE = 41472
VPITCH = 10368
PT640 = 40960
PT1728 = 110592
SL_WO = 102400
SL_W2 = 276480
OOB = 0x80000000

ARG = dict(x=0, wqkv=8, wo=16, w1=32, w2=40, c=48, wmod=56, out=64, dbg=72, ws=80)
SIZE = dict(x=S * D * 2, wqkv=D * 3 * D * 2, wo=D * D * 2, w1=D * DFF * 2, w2=DFF * D * 2, c=D * 2,
            wmod=D * 6 * D * 2, out=S * D * 2, dbg=256, ws=WS_END)

def vr(i, n=1):
    return f"v{i}" if n == 1 else f"v[{i}:{i+n-1}]"

def sr(i, n=1):
    return f"s{i}" if n == 1 else f"s[{i}:{i+n-1}]"

DPP_ALL = "row_mask:0xf bank_mask:0xf"

class Asm:
    def __init__(self):
        self.lines = []
    def __call__(self, text):
        for l in text.split("\n"):
            l = l.strip()
            if not l:
                continue
            self.lines.append(l if (l.endswith(":") or l.startswith(".")) else "    " + l)
    def srd(self, base, name):
        self(f"s_load_dwordx2 {sr(base, 2)}, s[0:1], {ARG[name]}")
        self(f"s_mov_b32 s{base+2}, {SIZE[name]}")
        self(f"s_mov_b32 s{base+3}, 0x20000")
    def begin(self, name):
        self(f".globl {name}\n.p2align 8\n.type {name},@function\n{name}:")
    def text(self):
        return "\n".join(self.lines) + "\n"

def descriptor(name, vgpr, sgpr=96):
    return f""".p2align 6
.amdhsa_kernel {name}
  .amdhsa_next_free_vgpr {vgpr}
  .amdhsa_next_free_sgpr {sgpr}
  .amdhsa_accum_offset {(vgpr + 3) // 4 * 4}
  .amdhsa_group_segment_fixed_size 0
  .amdhsa_kernarg_size 88
  .amdhsa_user_sgpr_count 2
  .amdhsa_user_sgpr_kernarg_segment_ptr 1
  .amdhsa_system_sgpr_workgroup_id_x 1
.end_amdhsa_kernel
"""

def interleave(primary, fillers):
    out = []
    for i, p in enumerate(primary):
        out.append(p)
        if i < len(fillers):
            out += fillers[i]
    return out


class VQ:
    def __init__(self):
        self.q = []
    def push(self, tag, n=1):
        self.q += [tag] * n
    def cnt(self, tag):
        last = max(k for k, t in enumerate(self.q) if t == tag)
        return len(self.q) - 1 - last


def tile_base(a, s_dst, s_tile, region, wide=False, tmp=60):
    lg, stride = (3, QKVS if region == NQKV else 14 * 16384) if wide else (4, 5 * 16384)
    a(f"""
    s_and_b32 s{s_dst}, s{s_tile}, {(1 << lg) - 1}
    s_mul_i32 s{s_dst}, s{s_dst}, {stride}
    s_bfe_u32 s{tmp}, s{s_tile}, {((5 - lg) << 16) | lg}
    s_lshl_b32 s{tmp}, s{tmp}, 21
    s_add_u32 s{s_dst}, s{s_dst}, s{tmp}
    s_lshl_b32 s{tmp}, s{s_tile}, {5 - lg}
    s_xor_b32 s{tmp}, s{tmp}, s{s_tile}
    s_and_b32 s{tmp}, s{tmp}, 32
    s_lshl_b32 s{tmp}, s{tmp}, 8
    s_xor_b32 s{tmp}, s{tmp}, s{S_POL}
    s_add_u32 s{s_dst}, s{s_dst}, s{tmp}
    s_add_u32 s{s_dst}, s{s_dst}, {region}
    """)

def stat_base(a, s_dst, s_tile, tmp=60):
    a(f"""
    s_bfe_u32 s{s_dst}, s{s_tile}, 0x40001
    s_lshl_b32 s{s_dst}, s{s_dst}, 14
    s_and_b32 s{tmp}, s{s_tile}, 1
    s_lshl_b32 s{tmp}, s{tmp}, 12
    s_add_u32 s{s_dst}, s{s_dst}, s{tmp}
    s_and_b32 s{tmp}, s{s_tile}, 32
    s_lshl_b32 s{tmp}, s{tmp}, 8
    s_xor_b32 s{tmp}, s{tmp}, s{S_POL}
    s_add_u32 s{s_dst}, s{s_dst}, s{tmp}
    s_add_u32 s{s_dst}, s{s_dst}, {NSTAT}
    """)

def tile_offsets(pol, region, wide):
    lg, stride = (3, QKVS if region == NQKV else 14 * 16384) if wide else (4, 5 * 16384)
    return [region + (t & ((1 << lg) - 1)) * stride + (((t & 31) >> lg) << 21) + ((((t >> 5) ^ (t >> lg)) & 1) * 8192 ^ pol) for t in range(64)]
```

```python
import re, sys
from gcommon import *
STAMP = 0x3800000

def instrument(src, names):
    out = []
    kidx = -1
    nv = {m.group(1): min(int(m.group(2)), 254) for m in re.finditer(r"amdhsa_kernel (\w+)\s+\.amdhsa_next_free_vgpr (\d+)", src)}
    marks = []
    for line in src.split("\n"):
        s = line.strip()
        m = re.match(r"^(\w+_kernel):$", s)
        if m:
            kidx += 1
            marks.append((len(out), nv[m.group(1)]))
            out.append(line)
            out.append("    s_memrealtime s[88:89]\n    s_memtime s[96:97]")
            out.append("    s_load_dwordx2 s[92:93], s[0:1], 80")
            out.append("    s_mov_b32 s94, 0x4000000\n    s_mov_b32 s95, 0x20000\n    s_mov_b32 s98, s2")
            out.append("    v_lshrrev_b32 vSA, 6, v0\n    v_lshlrev_b32 vSA, 7, vSA")
            continue
        m = re.match(r"^; @s (\w+)", s)
        if m:
            if m.group(1) not in names: continue
            n = names.index(m.group(1)) + 1
            out.append(f"    s_memrealtime s[{64+2*(n-1)}:{65+2*(n-1)}]\n    s_memtime s[86:87]\n    s_waitcnt lgkmcnt(0)\n    s_mov_b32 s{65+2*(n-1)}, s86")
            continue
        if s == "s_endpgm":
            out.append("    s_waitcnt vmcnt(0)\n    s_memrealtime s[90:91]\n    s_memtime s[86:87]\n    s_mov_b64 exec, -1\n    s_waitcnt lgkmcnt(0)")
            out.append(f"    s_lshl_b32 s89, s98, 11\n    s_add_u32 s89, s89, {STAMP + kidx * 0x100000}")
            out.append("    v_mov_b32 vSB, s88\n    buffer_store_dword vSB, vSA, s[92:95], s89 offen")
            out.append("    s_sub_u32 s86, s86, s96\n    v_mov_b32 vSB, s86\n    buffer_store_dword vSB, vSA, s[92:95], s89 offen offset:60")
            out.append("    v_mov_b32 vSB, s90\n    buffer_store_dword vSB, vSA, s[92:95], s89 offen offset:4")
            for n in range(1, 12):
                out.append(f"    v_mov_b32 vSB, s{64+2*(n-1)}\n    buffer_store_dword vSB, vSA, s[92:95], s89 offen offset:{4+4*n}")
                out.append(f"    v_mov_b32 vSB, s{65+2*(n-1)}\n    buffer_store_dword vSB, vSA, s[92:95], s89 offen offset:{64+4+4*n}")
        out.append(line)
    for i, (pos, n) in enumerate(marks):
        end = marks[i + 1][0] if i + 1 < len(marks) else len(out)
        for j in range(pos, end):
            out[j] = out[j].replace("vSA", f"v{n}").replace("vSB", f"v{n+1}")
    t = "\n".join(out)
    t = re.sub(r"next_free_vgpr (\d+)", lambda m: f"next_free_vgpr {min(256, int(m.group(1)) + 4)}", t)
    t = re.sub(r"accum_offset (\d+)", lambda m: f"accum_offset {min(256, int(m.group(1)) + 4)}", t)
    t = re.sub(r"next_free_sgpr \d+", "next_free_sgpr 102", t)
    return t + "\n; STAMPS " + ",".join(names) + "\n"

if __name__ == "__main__":
    open(sys.argv[2], "w").write(instrument(open(sys.argv[1]).read(), sys.argv[3].split(",")))
```

```python
import sys
from gcommon import *
from stamp import STAMP, instrument
from k_prep import wave_sum2
C_US = 90

def make(src, names, slot, wave=0):
    st = instrument(src, names)
    a = Asm()
    a.begin("probe_kernel")
    a(f"""
    s_load_dwordx2 s[8:9], s[0:1], 80
    s_mov_b32 s10, 0x4000000
    s_mov_b32 s11, 0x20000
    s_cmp_ge_u32 s2, 1
    s_cbranch_scc1 L_probe_end
    v_mul_u32_u24 v1, {3 * 2048}, v0
    v_add_u32 v1, {STAMP + wave * 128 + slot * 4}, v1
    s_waitcnt lgkmcnt(0)
    buffer_load_dword v2, v1, s[8:11], 0 offen sc0 sc1
    s_waitcnt vmcnt(0)
    v_readfirstlane_b32 s12, v2
    s_nop 1
    v_subrev_u32 v2, s12, v2
    v_cvt_f32_i32 v2, v2
    v_mov_b32 v3, 0
    s_nop 0
    """)
    wave_sum2(a, 2, 3, 4, 5)
    a(f"""
    v_mul_f32 v2, 0x3c800000, v2
    v_cvt_i32_f32 v2, v2
    s_nop 0
    v_readfirstlane_b32 s13, v2
    s_nop 1
    s_add_u32 s12, s12, s13
    s_mov_b32 s16, 0
L_probe_spin:
    s_memrealtime s[14:15]
    s_add_u32 s16, s16, 1
    s_waitcnt lgkmcnt(0)
    s_sub_u32 s14, s14, s12
    s_cmp_gt_u32 s16, 100000
    s_cbranch_scc1 L_probe_end
    s_cmp_lt_u32 s14, {C_US * 100}
    s_cbranch_scc1 L_probe_spin
L_probe_end:
    s_endpgm
    """)
    l = "; @launch grid=(256,1,1) block=(512,1,1) lds=163840\n"
    k = f"; @launch kernel={NAME}_kernel grid=(256,1,1) block=(512,1,1) lds=163840\n; @launch kernel=probe_kernel grid=(1,1,1) block=(64,1,1) lds=0\n"
    st = st.replace(l, k).replace('.section .rodata,"a"\n', a.text() + '.section .rodata,"a"\n', 1)
    return st + descriptor("probe_kernel", 8, 24)

if __name__ == "__main__":
    base = sys.argv[1]
    names = sys.argv[2].split(",")
    src = open(f"v/{base}.s").read()
    real = [n for n in names if n not in ("start", "end")]
    for i, n in enumerate(names):
        slot = 0 if n == "start" else 1 if n == "end" else 2 + real.index(n)
        open(f"v/d{i}.s", "w").write(make(src, real, slot))
        print(f"v/d{i}.s <- {n}")
```

```python
from diag import *
src = open("v/f7.s").read()
def tiny(block, lds, vg):
    a = Asm()
    a.begin("tiny_kernel")
    a(f"""
    s_memrealtime s[12:13]
    s_load_dwordx2 s[8:9], s[0:1], 80
    s_mov_b32 s10, 0x4000000
    s_mov_b32 s11, 0x20000
    s_cmp_ge_u32 s2, 256
    s_cbranch_scc1 L_tiny_end
    s_lshl_b32 s14, s2, 11
    s_add_u32 s14, s14, {STAMP + 15 * 128}
    v_mov_b32 v1, 0
    s_waitcnt lgkmcnt(0)
    v_mov_b32 v2, s12
    buffer_store_dword v2, v1, s[8:11], s14 offen
L_tiny_end:
    s_endpgm
    """)
    return a.text(), f"; @launch kernel=tiny_kernel grid=(256,1,1) block=({block},1,1) lds={lds}\n", descriptor("tiny_kernel", vg, 24)
def build(path, wave, t):
    s = make(src, ["a_go"], 0, wave)
    if t:
        code, line, desc = t
        key = f"; @launch kernel={NAME}_kernel"
        s = s.replace(key, line + key, 1).replace('.section .rodata,"a"\n', code + '.section .rodata,"a"\n', 1) + desc
    open(path, "w").write(s)
build("v/d0.s", 0, None)
build("v/d1.s", 0, tiny(64, 0, 8))
build("v/d2.s", 15, tiny(64, 0, 8))
build("v/d3.s", 15, tiny(512, 163840, 240))
build("v/d4.s", 0, tiny(512, 163840, 240))
build("v/d5.s", 0, None)
```

```python
import sys
from hipu import *
a = open(sys.argv[1] if len(sys.argv) > 1 else 'out.s').read()
l = cl.launch_list_of(a, True)
from gcommon import NAME
if l:
    co = build(a, l[0].kernel, 11)
    print("regcheck:", cl.address_register_problem(co, None, cl.launch_list_kernel_names(l)))
else:
    co = build(a, NAME + "_kernel", 11)
    print("regcheck:", cl.address_register_problem(co, NAME + "_kernel"))
print(subprocess.run("llvm-readelf -S " + co + " | grep text", shell=True, capture_output=True, text=True).stdout)
r = subprocess.run(["llvm-readelf", "-s", co], capture_output=True, text=True).stdout
syms = sorted({(int(x.split()[1], 16), x.split()[-1]) for x in r.splitlines() if x.strip().endswith("_kernel") and "__hx" not in x})
print(syms)
```
